```python
import torch

def _softmax(x, axis=-1):
    return torch.softmax(x, dim=axis)

def _gelu(x):
    return torch.nn.functional.gelu(x, approximate='tanh')

def _silu(x):
    return torch.nn.functional.silu(x)

def _sigmoid(x):
    return torch.sigmoid(x)

def _layernorm(x, axis=-1, eps=1e-05):
    m = x.mean(dim=axis, keepdim=True)
    v = x.var(dim=axis, keepdim=True, unbiased=False)
    return (x - m) / torch.sqrt(v + eps)

def _scatter_add(tgt, idx, src, axis=0):
    return tgt.clone().index_add_(axis, idx, src)

def _segment_sum(src, seg, n):
    out = torch.zeros((n,) + src.shape[1:], dtype=src.dtype)
    return out.index_add_(0, seg, src)

def _pad(x, pw):
    flat = tuple((v for pair in reversed(pw) for v in pair))
    return torch.nn.functional.pad(x, flat)
kernel_name = 'adaLN_cond__sliding_block_cached__glu_gated_geglu__decode'

def setup_inputs():

    _w = lambda a: (lambda t: t.to(torch.bfloat16) if t.is_floating_point() else t)(torch.as_tensor(a))

    def _A_setup():
        B, Sq, D = (4, 1, 576)
        Hq, Hkv, Sk, Dh = (32, 16, 4096, 128)
        assert Hq % Hkv == 0, (Hq, Hkv)
        return {'x': _w((lambda *s: torch.randn(*s, dtype=torch.bfloat16) * 0.05)(B, Sq, D)), 'k_cache': _w((lambda *s: torch.randn(*s, dtype=torch.bfloat16) * 0.8)(B, Hkv, Sk, Dh)), 'v_cache': _w((lambda *s: torch.randn(*s, dtype=torch.bfloat16) * 3.2)(B, Hkv, Sk, Dh)), 'wq': _w((lambda *s: torch.randn(*s, dtype=torch.bfloat16) * 0.8)(D, Hq * Dh) * D ** (-0.5)), 'wo': _w((lambda *s: torch.randn(*s, dtype=torch.bfloat16) * 3.2)(Hq * Dh, D) * (Hq * Dh) ** (-0.5))}
    _A_in = _A_setup()

    def _B_setup():
        B, S, Dm, Df = (4, 1, 576, 4608)
        return {'x': _w((lambda *s: torch.randn(*s, dtype=torch.bfloat16) * 0.05)(B, S, Dm)), 'w_gate': _w((lambda *s: torch.randn(*s, dtype=torch.bfloat16) * 3.2)(Dm, Df) * Dm ** (-0.5)), 'w_up': _w((lambda *s: torch.randn(*s, dtype=torch.bfloat16) * 3.2)(Dm, Df) * Dm ** (-0.5)), 'w_down': _w((lambda *s: torch.randn(*s, dtype=torch.bfloat16) * 3.2)(Df, Dm) * Df ** (-0.5))}
    _B_in = _B_setup()
    return {'A_x': _A_in['x'], 'A_k_cache': _A_in['k_cache'], 'A_v_cache': _A_in['v_cache'], 'A_wq': _A_in['wq'], 'A_wo': _A_in['wo'], 'B_x': _B_in['x'], 'B_w_gate': _B_in['w_gate'], 'B_w_up': _B_in['w_up'], 'B_w_down': _B_in['w_down'], 'c': _w((lambda *s: torch.randn(*s, dtype=torch.bfloat16) * 0.4)(4, 576) * 8.0), 'w_mod': _w((lambda *s: torch.randn(*s, dtype=torch.bfloat16) * 0.4)(576, 6 * 576) * 576 ** (-0.5) * 8.0)}

def reference(A_x, A_k_cache, A_v_cache, A_wq, A_wo, B_x, B_w_gate, B_w_up, B_w_down, c, w_mod):

    def _A_ref(x, k_cache, v_cache, wq, wo):
        B, Sq, D = x.shape
        Hq, Dh = (32, 128)
        Hkv, Sk = (k_cache.shape[1], k_cache.shape[2])
        W = min(4096, max(256, Sk // 4))
        rep = Hq // Hkv
        q = (lambda x, *d: x.permute(*d))((x @ wq).reshape(B, Sq, Hq, Dh), 0, 2, 1, 3)
        k = (lambda x, n, axis: torch.repeat_interleave(x, n, dim=axis))(k_cache[:, :, Sk - W:, :], rep, axis=1)
        v = (lambda x, n, axis: torch.repeat_interleave(x, n, dim=axis))(v_cache[:, :, Sk - W:, :], rep, axis=1)
        scores = torch.einsum('bhqd,bhkd->bhqk', q, k) * Dh ** (-0.5)
        p = _softmax(scores, axis=-1)
        o = torch.einsum('bhqk,bhkd->bhqd', p, v)
        return (lambda x, *d: x.permute(*d))(o, 0, 2, 1, 3).reshape(B, Sq, Hq * Dh) @ wo

    def _B_ref(x, w_gate, w_up, w_down):
        g = torch.einsum('bsd,df->bsf', x, w_gate)
        u = torch.einsum('bsd,df->bsf', x, w_up)
        h = _gelu(g) * u
        return torch.einsum('bsf,fd->bsd', h, w_down)
    x = A_x
    mod = (_silu(c) @ w_mod).reshape(c.shape[0], 6, 1, -1)
    sa, ca, ga, sb, cb, gb = (mod[:, 0].clone(), mod[:, 1].clone(), mod[:, 2].clone(), mod[:, 3].clone(), mod[:, 4].clone(), mod[:, 5].clone())
    h = _layernorm(x, axis=-1) * (1 + ca) + sa
    x = x + ga * _A_ref(h, A_k_cache, A_v_cache, A_wq, A_wo)
    h = _layernorm(x, axis=-1) * (1 + cb) + sb
    x = x + gb * _B_ref(h, B_w_gate, B_w_up, B_w_down)
    return x
```

```python
import re
TRANS=('v_exp_f32','v_log_f32','v_rcp_f32','v_rsq_f32','v_sqrt_f32','v_sin_f32','v_cos_f32')
def regs_of(tok):
    tok=tok.strip()
    tok=re.sub(r'^-|^abs\(|\)$|^\|','',tok).strip('|')
    m=re.fullmatch(r'([vsa])\[(\d+):(\d+)\]',tok)
    if m: return {(m.group(1),i) for i in range(int(m.group(2)),int(m.group(3))+1)}
    m=re.fullmatch(r'([vsa])(\d+)',tok)
    if m: return {(m.group(1),int(m.group(2)))}
    if tok in('vcc','vcc_lo','vcc_hi'): return {('vcc',0)}
    if tok in('exec','exec_lo','exec_hi'): return {('exec',0)}
    if tok=='m0': return {('m0',0)}
    return set()
class Ins:
    def __init__(s,text):
        s.text=text
        t=text.split(';')[0].strip()
        s.label=t.endswith(':')
        s.directive=t.startswith('.')
        s.op=t.split()[0] if t else ''
        rest=t[len(s.op):].strip()
        ops=[o.strip() for o in rest.split(',')] if rest else []
        s.mods=''
        if ops:
            parts=ops[-1].split()
        rest2=re.sub(r'\b(op_sel|op_sel_hi|neg_lo|neg_hi|quad_perm):\[[^\]]*\]',lambda m:m.group(0).replace(',','/'),rest)
        ops=[o.strip() for o in rest2.split(',')] if rest2 else []
        if ops:
            parts=ops[-1].split()
            ops[-1]=parts[0]; s.mods=' '.join(parts[1:])
        s.ops=ops
        op=s.op
        s.mfma=op.startswith('v_mfma')
        s.valu=op.startswith('v_') and not s.mfma
        s.trans=any(op.startswith(x) for x in TRANS)
        s.dpp='_dpp' in op or 'row_' in s.mods or 'quad_perm' in s.mods
        s.permlane=op.startswith('v_permlane')
        s.readlane=op.startswith('v_readlane') or op.startswith('v_readfirstlane')
        s.vmem=op.startswith('buffer_') or op.startswith('global_')
        s.ds=op.startswith('ds_')
        s.salu=op.startswith('s_')
        s.ldsdma=s.vmem and ' lds' in ' '+s.mods
        R=[regs_of(o) for o in ops]
        s.w=set(); s.r=set(); s.srcC=set()
        if s.valu or s.mfma:
            nd=1
            if op.startswith('v_add_co') or op.startswith('v_addc_co') or op.startswith('v_sub_co'): nd=2
            for x in R[:nd]: s.w|=x
            for x in R[nd:]: s.r|=x
            if s.permlane: s.w|=R[1]; s.r|=R[0]
            if op.startswith('v_fmac') or op.startswith('v_dot2c') or s.dpp or op.startswith('v_writelane'): s.r|=R[0]
            if s.mfma: s.srcC=R[3] if len(R)>3 else set()
        elif s.vmem:
            if 'store' in op or 'atomic' in op or s.ldsdma:
                for x in R: s.r|=x
            else:
                s.w|=R[0]
                for x in R[1:]: s.r|=x
        elif s.ds:
            if op.startswith('ds_read') or '_rtn' in op or 'permute' in op or 'swizzle' in op:
                s.w|=R[0]
                for x in R[1:]: s.r|=x
            else:
                for x in R: s.r|=x
        elif s.salu:
            if op.startswith('s_cmp') or op.startswith('s_cbranch') or op.startswith('s_waitcnt') or op.startswith('s_bitcmp'):
                for x in R: s.r|=x
            elif R:
                s.w|=R[0]
                for x in R[1:]: s.r|=x
        s.widestore=s.vmem and 'store' in op and ('x4' in op or 'x3' in op)
        s.storedata=set()
        if s.widestore: s.storedata=R[0] if op.startswith('buffer_') else R[1]
    def states(s):
        if s.label or s.directive or not s.op: return 0
        if s.op=='s_nop': return int(s.ops[0],0)+1
        return 1
def need(p,c):
    n=0
    V=lambda S:{x for x in S if x[0] in 'va' and x[0]!='vcc'}
    S_=lambda S:{x for x in S if x[0] in('s','vcc')}
    if p.valu:
        pv=V(p.w); ps=S_(p.w)
        if c.mfma and pv&c.r: n=max(n,2)
        if c.valu and ps&c.r: n=max(n,4 if c.op.startswith('v_readlane') or c.op.startswith('v_writelane') else 2)
        if c.valu and ('vcc',0) in ps and c.op.startswith('v_cndmask') : n=max(n,2)
        if c.vmem and ps&c.r: n=max(n,5)
        if p.trans and (c.valu and not c.trans) and pv&c.r: n=max(n,1)
        if c.dpp and pv&c.r: n=max(n,2)
        if c.permlane and pv&c.r: n=max(n,2)
        if c.readlane and pv&c.r: n=max(n,1)
    if p.mfma:
        passes=8 if '32x32' in p.op else 4
        d={4:8,8:12}[passes]
        if c.mfma:
            ab=c.r-c.srcC if len(c.ops)>3 else c.r
            ab=regs_of(c.ops[1])|regs_of(c.ops[2])
            if p.w&ab: n=max(n,d)
            if p.w&c.srcC and p.w!=c.srcC: n=max(n,d-2)
        elif (c.valu or c.vmem or c.ds) and p.w&(c.r|c.w): n=max(n,d)
        if c.valu and p.srcC&c.w: n=max(n,passes-1)
    if p.salu and ('m0',0) in p.w and c.ldsdma: n=max(n,1)
    if p.widestore and c.valu and p.storedata&c.w: n=max(n,2)
    if p.widestore and (c.vmem or c.ds) and p.storedata&c.w: n=max(n,1)
    return n
def fix_hazards(lines):
    out=[]
    for t in lines:
        c=Ins(t)
        if c.states():
            dist=0; req=0
            for p in reversed(out):
                if p.states()==0: continue
                r=need(p,c)-dist
                if r>req: req=r
                dist+=p.states()
                if dist>=12: break
                if p.op in('s_branch','s_endpgm'): break
            if req>0: out.append(Ins(f's_nop {req-1}'))
        out.append(c)
    lab={c.text.split(';')[0].strip()[:-1]:i for i,c in enumerate(out) if c.label}
    probs=[]
    for i,b in enumerate(out):
        if b.op.startswith('s_cbranch') or b.op=='s_branch':
            tgt=lab.get(b.ops[0])
            if tgt is None: continue
            pre=[];d=0
            for p in reversed(out[:i+1]):
                if p.states()==0: continue
                pre.append(p); d+=p.states()
                if d>=12: break
            da=0
            for c in out[tgt:]:
                if c.states()==0: continue
                dist=da
                for p in pre:
                    if need(p,c)>dist: probs.append((b.text,p.text,c.text))
                    dist+=p.states()
                da+=c.states()
                if da>=12 or c.op in('s_branch','s_endpgm'): break
    return [c.text for c in out],probs
```

```python
import sys, struct
sys.path.insert(0,'work')
from asmlib import fix_hazards
NAME='adaLN_cond__sliding_block_cached__glu_gated_geglu__decode_kernel'
def f2u(x): return struct.unpack('<I',struct.pack('<f',x))[0]
LOG2E=1.4426950408889634
ACT=0; ACTS=1168; PART=4672; PARTS=1152; OC=11584; HH=15680; TR=16448; ZERO=18496; CNT=18752; MX=18816; KL=20480; LDSZ=86016
C_ACT1,C_PART1,C_ACT2,C_PART2,C_KV,C_MX,C_OC,C_OK,C_OK2,C_HOLD,C_LATE,C_WIS=[CNT+4*i for i in range(12)]
W_F=0; W_MOD=4096; W_QB=32768; W_LC=65536; LCS=10240
W_ML=W_LC; W_OP=W_ML+16384; W_S4=W_OP+262144; W_X1=W_S4+73728; W_S5=W_X1+73728
assert W_S5+72*18432<=W_LC+174*LCS
W_ST=4<<20; WSZ=8<<20
BOUND=400000
DEF=dict(SLM=0,SLQ=0,NOCLR=0,SL1=4,SL2=8,NB=8,D1=3,NLO=8,D2=5,NMID=16,D3=4,DH=7,N0=24,LTRIG=8,DLATE=3,FL=80,LNG=28,SIG=31,STAMP=0,PREF=1,HINT=1,HOLD=1,COOP=1)

class G:
    def __init__(s,P):
        s.L=[]; s.P=dict(DEF); s.P.update(P); s.n=0; s.stampnames={}
    def e(s,t):
        for l in t.split('\n'):
            l=l.strip()
            if l: s.L.append(l)
    def lab(s,p='L'):
        s.n+=1; return f'{p}_{s.n}'
    def stamp(s,i,name=None):
        if s.P['STAMP']:
            s.e(f's_memrealtime s[{64+2*i}:{65+2*i}]')
    def end(s):
        if s.P['STAMP']: s.e('s_branch L_stampout')
        else: s.e('s_endpgm')
    def ws_srd(s):
        s.e(f's_mov_b32 s44, s34\ns_mov_b32 s45, s35\ns_mov_b32 s46, {WSZ}\ns_mov_b32 s47, 0x20000')
    def srd(s,d,p,n):
        s.e(f's_mov_b32 s{d}, s{p}\ns_mov_b32 s{d+1}, s{p+1}\ns_mov_b32 s{d+2}, {n}\ns_mov_b32 s{d+3}, 0x20000')
    def lds_spin(s,addr,val,vt,vz,sleep=0,ge=True):
        l=s.lab('Lsp')
        s.e(f'{l}:')
        if sleep: s.e(f's_sleep {sleep}')
        s.e(f'ds_read_b32 v{vt}, v{vz} offset:{addr}\ns_waitcnt lgkmcnt(0)\nv_cmp_gt_u32 vcc, {val}, v{vt}\ns_cbranch_vccnz {l}')
    def lds_signal(s,addr,vz,vone,restore='-1'):
        s.e(f's_mov_b64 exec, 1\nds_add_u32 v{vz}, v{vone} offset:{addr}')
        s.setexec(restore)
    def setexec(s,m):
        if m in('-1','1'): s.e(f's_mov_b64 exec, {m}')
        else:
            m=int(m,0); s.e(f's_mov_b32 exec_lo, {m&0xffffffff:#x}\ns_mov_b32 exec_hi, {m>>32:#x}')
    def poll(s,loads,regs,vt,body=None,sleep=0):
        l=s.lab('Lpo'); d=s.lab('Lpd'); n=len(loads)
        if sleep:
            l0=s.lab('Lp0')
            s.e(f's_mov_b32 s62, {BOUND}\ns_branch {l0}\n{l}:\ns_sleep {sleep}\ns_sub_u32 s62, s62, 1\ns_cbranch_scc1 {d}\n{l0}:')
        else:
            s.e(f's_mov_b32 s62, {BOUND}\n{l}:\ns_sub_u32 s62, s62, 1\ns_cbranch_scc1 {d}')
        for x in loads: s.e(x)
        first=True
        for i in range(n):
            if body or i==0: s.e(f's_waitcnt vmcnt({n-1-i if body else 0})')
            r=list(regs[i])
            while r:
                if first:
                    if len(r)>=3: s.e(f'v_max3_u32 v{vt}, v{r[0]}, v{r[1]}, v{r[2]}'); r=r[3:]
                    elif len(r)==2: s.e(f'v_max_u32 v{vt}, v{r[0]}, v{r[1]}'); r=[]
                    else: s.e(f'v_mov_b32 v{vt}, v{r[0]}'); r=[]
                    first=False
                elif len(r)>=2: s.e(f'v_max3_u32 v{vt}, v{vt}, v{r[0]}, v{r[1]}'); r=r[2:]
                else: s.e(f'v_max_u32 v{vt}, v{vt}, v{r[0]}'); r=[]
            if body: body(i)
        s.e(f'v_cmp_eq_u32 vcc, -1, v{vt}\ns_cbranch_vccnz {l}\n{d}:')
    def unpack(s,src,lo,hi):
        if hi==src:
            s.e(f'v_lshlrev_b32 v{lo}, 16, v{src}\nv_and_b32 v{hi}, 0xffff0000, v{src}')
        else:
            s.e(f'v_and_b32 v{hi}, 0xffff0000, v{src}\nv_lshlrev_b32 v{lo}, 16, v{src}')
    def round_pairs(s,base,n,tmp):
        for k in range(n//2): s.e(f'v_cvt_pk_bf16_f32 v{tmp+k}, v{base+2*k}, v{base+2*k+1}')
        for k in range(n//2): s.unpack(tmp+k,base+2*k,base+2*k+1)
    def round1(s,r):
        s.e(f'v_cvt_pk_bf16_f32 v{r}, v{r}, v{r}\nv_lshlrev_b32 v{r}, 16, v{r}')
    def perms(s,src,dst):
        for e_ in range(8):
            for rp in range(4):
                a=src+4*(2*rp)+(e_>>1); b=src+4*(2*rp+1)+(e_>>1)
                s.e(f'v_perm_b32 v{dst+4*e_+rp}, v{b}, v{a}, s{60+(e_&1)}')
    def layernorm(s,X,t):
        s.e(f'v_pk_add_f32 v[{t}:{t+1}], v[{X}:{X+1}], v[{X+2}:{X+3}]')
        s.e(f'v_pk_mul_f32 v[{t+2}:{t+3}], v[{X}:{X+1}], v[{X}:{X+1}]')
        s.e(f'v_pk_fma_f32 v[{t+2}:{t+3}], v[{X+2}:{X+3}], v[{X+2}:{X+3}], v[{t+2}:{t+3}]')
        for k in range(2,6):
            s.e(f'v_pk_add_f32 v[{t}:{t+1}], v[{t}:{t+1}], v[{X+2*k}:{X+2*k+1}]')
            s.e(f'v_pk_fma_f32 v[{t+2}:{t+3}], v[{X+2*k}:{X+2*k+1}], v[{X+2*k}:{X+2*k+1}], v[{t+2}:{t+3}]')
        s.e(f'v_add_f32 v{t}, v{t}, v{t+1}\nv_add_f32 v{t+2}, v{t+2}, v{t+3}')
        for r in (1,2,4,8):
            s.e(f'v_add_f32_dpp v{t}, v{t}, v{t} row_ror:{r} row_mask:0xf bank_mask:0xf')
            s.e(f'v_add_f32_dpp v{t+2}, v{t+2}, v{t+2} row_ror:{r} row_mask:0xf bank_mask:0xf')
        s.e(f'''v_readlane_b32 s52, v{t}, 0
        v_readlane_b32 s53, v{t}, 16
        v_readlane_b32 s54, v{t}, 32
        v_readlane_b32 s55, v{t+2}, 0
        v_readlane_b32 s56, v{t+2}, 16
        v_readlane_b32 s57, v{t+2}, 32
        v_mov_b32 v{t}, s52
        v_add_f32 v{t}, s53, v{t}
        v_mov_b32 v{t+2}, s55
        v_add_f32 v{t}, s54, v{t}
        v_add_f32 v{t+2}, s56, v{t+2}
        v_mul_f32 v{t}, {f2u(1/576):#x}, v{t}
        v_add_f32 v{t+2}, s57, v{t+2}
        v_mul_f32 v{t+1}, v{t}, v{t}
        v_mul_f32 v{t+2}, {f2u(1/576):#x}, v{t+2}
        v_sub_f32 v{t+2}, v{t+2}, v{t+1}
        v_max_f32 v{t+2}, 0, v{t+2}
        v_cvt_pk_bf16_f32 v{t+1}, v{t}, v{t+2}
        v_and_b32 v{t+2}, 0xffff0000, v{t+1}
        v_lshlrev_b32 v{t}, 16, v{t+1}
        v_add_f32 v{t+2}, {f2u(1e-5):#x}, v{t+2}''')
        s.e(f'v_cvt_pk_bf16_f32 v{t+2}, v{t+2}, v{t+2}')
        s.e(f'v_pk_add_f32 v[{X}:{X+1}], v[{X}:{X+1}], v[{t}:{t+1}] op_sel_hi:[1,0] neg_lo:[0,1] neg_hi:[0,1]')
        s.e(f'v_lshlrev_b32 v{t+2}, 16, v{t+2}')
        s.e(f'v_pk_add_f32 v[{X+2}:{X+3}], v[{X+2}:{X+3}], v[{t}:{t+1}] op_sel_hi:[1,0] neg_lo:[0,1] neg_hi:[0,1]')
        s.e(f'v_sqrt_f32 v{t+2}, v{t+2}')
        for k in range(2,6):
            s.e(f'v_pk_add_f32 v[{X+2*k}:{X+2*k+1}], v[{X+2*k}:{X+2*k+1}], v[{t}:{t+1}] op_sel_hi:[1,0] neg_lo:[0,1] neg_hi:[0,1]')
        s.e(f'v_cvt_pk_bf16_f32 v{t+2}, v{t+2}, v{t+2}\nv_lshlrev_b32 v{t+2}, 16, v{t+2}\nv_rcp_f32 v{t+2}, v{t+2}')
        s.round_pairs(X,12,t+4)
        for k in range(6):
            s.e(f'v_pk_mul_f32 v[{X+2*k}:{X+2*k+1}], v[{X+2*k}:{X+2*k+1}], v[{t+2}:{t+3}] op_sel_hi:[1,0]')
        s.round_pairs(X,12,t+4)
    def modulate(s,X,T,S,t,vaddr):
        for k in range(6): s.e(f'v_pk_mul_f32 v[{X+2*k}:{X+2*k+1}], v[{X+2*k}:{X+2*k+1}], v[{T+2*k}:{T+2*k+1}]')
        s.round_pairs(X,12,t)
        for k in range(6): s.e(f'v_pk_add_f32 v[{X+2*k}:{X+2*k+1}], v[{X+2*k}:{X+2*k+1}], v[{S+2*k}:{S+2*k+1}]')
        for k in range(6):
            s.e(f'v_cvt_pk_bf16_f32 v{t+k}, v{X+2*k}, v{X+2*k+1}')
            if k&1: s.e(f'ds_write_b64 v{vaddr}, v[{t+k-1}:{t+k}] offset:{(k>>1)*384}')
    def mod_rows(s,cs,cc,T,S,t,voff,soff_row,sleep=0):
        s.e(f's_add_u32 s58, s{soff_row}, {W_MOD+cs*4608}\ns_add_u32 s59, s{soff_row}, {W_MOD+cc*4608}')
        loads=[f'buffer_load_dwordx2 v[{t+2*k}:{t+2*k+1}], v{voff}, s[44:47], s58 offen offset:{384*k} sc1' for k in range(3)]
        loads+=[f'buffer_load_dwordx2 v[{t+6+2*k}:{t+7+2*k}], v{voff}, s[44:47], s59 offen offset:{384*k} sc1' for k in range(3)]
        s.poll(loads,[[t+2*k,t+2*k+1] for k in range(6)],T,sleep=sleep)
        for k in range(6): s.unpack(t+6+k,T+2*k,T+2*k+1)
        for k in range(6): s.e(f'v_pk_add_f32 v[{T+2*k}:{T+2*k+1}], v[{T+2*k}:{T+2*k+1}], 1.0 op_sel_hi:[1,0]')
        for k in range(6): s.unpack(t+k,S+2*k,S+2*k+1)
        s.round_pairs(T,12,t)
    def silu_row(s,src,X,t,vaddr):
        for k in range(6): s.unpack(src+k,X+2*k,X+2*k+1)
        for k in range(12): s.e(f'v_mul_f32 v{t+k}, {f2u(-LOG2E):#x}, v{X+k}')
        for k in range(12): s.e(f'v_exp_f32 v{t+k}, v{t+k}')
        for k in range(12): s.e(f'v_add_f32 v{t+k}, 1.0, v{t+k}')
        for k in range(12): s.e(f'v_rcp_f32 v{t+k}, v{t+k}')
        for k in range(6): s.e(f'v_pk_mul_f32 v[{X+2*k}:{X+2*k+1}], v[{X+2*k}:{X+2*k+1}], v[{t+2*k}:{t+2*k+1}]')
        for k in range(6):
            s.e(f'v_cvt_pk_bf16_f32 v{t+k}, v{X+2*k}, v{X+2*k+1}')
            if k&1: s.e(f'ds_write_b64 v{vaddr}, v[{t+k-1}:{t+k}] offset:{(k>>1)*384}')
    E48='0xffffffffffff'
    def row_setup(s,rowreg):
        s.e(f'v_lshlrev_b32 v12, 3, v0\ns_mul_i32 s63, s{rowreg}, {ACTS}\nv_add_u32 v13, s63, v12\ns_mul_i32 s63, s{rowreg}, 1152')
    def row_loads(s,dst):
        s.setexec(s.E48)
        for k in range(3): s.e(f'buffer_load_dwordx2 v[{dst+2*k}:{dst+2*k+1}], v12, s[48:51], s63 offen offset:{384*k}')
        s.setexec('-1')

    def kv_start(s):
        P=s.P
        s.e(f"""
        s_lshr_b32 s6, s5, 4
        s_lshl_b32 s7, s4, 1
        s_add_u32 s6, s6, s7                ; hkv
        s_bfe_u32 s7, s5, 0x20002           ; b
        s_lshl_b32 s52, s7, 4
        s_add_u32 s52, s52, s6
        s_lshl_b32 s52, s52, 20             ; (b*16+hkv)<<20
        s_and_b32 s53, s5, 3
        s_lshl_b32 s53, s53, 2
        s_add_u32 s53, s53, s3
        s_add_u32 s53, s53, 48
        s_lshl_b32 s53, s53, 14             ; 3072*256 + (split*4+w)*16384
        s_add_u32 s52, s52, s53
        v_lshrrev_b32 v15, 4, v0            ; g
        v_and_b32 v14, 15, v0               ; i
        v_lshlrev_b32 v13, 8, v15
        v_xor_b32 v7, v14, v15
        v_xor_b32 v8, 4, v7
        v_xor_b32 v9, 8, v7
        v_xor_b32 v10, 12, v7
        v_lshl_add_u32 v1, v7, 4, v13
        v_lshl_add_u32 v2, v8, 4, v13
        v_lshl_add_u32 v3, v9, 4, v13
        v_lshl_add_u32 v4, v10, 4, v13
        s_lshl_b32 s48, s3, 14
        s_add_u32 s48, s48, {KL}
        s_add_u32 s49, s48, 0x1000
        s_add_u32 s50, s48, 0x2000
        s_add_u32 s51, s48, 0x3000
        s_mov_b32 s54, 0
        s_movk_i32 s55, 0x1000
        s_movk_i32 s56, 0x2000
        s_movk_i32 s57, 0x3000
        s_movk_i32 s38, 0x4000
        s_mov_b32 s39, 0x20000
        s_mov_b32 m0, s48
        s_sub_u32 s53, s2, 82
        s_cmp_ge_u32 s53, 170
        s_cselect_b32 s53, 1, 0
        s_waitcnt lgkmcnt(0)
        s_add_u32 s36, s10, s52
        s_addc_u32 s37, s11, 0
        s_cmp_eq_u32 s53, {1 if P['HOLD'] else 2}
        s_cbranch_scc1 L_kv_hold
        """)
        for t in range(P['D1']): s.kload(t)
        s.e('s_barrier')
    def thr(s,n,extra=0):
        P=s.P; D=P['D1'] if n<P['NLO'] else (P['D2'] if n<P['NMID'] else P['D3']); DH=P['DH']
        q=lambda d: 4 if (n>=P['N0'] and n-d<P['N0']) else 0
        if n>=D:
            l=s.lab('Lt'); s.e(f's_cbranch_scc1 {l}\ns_waitcnt vmcnt({D-1+q(D)})\n{l}:')
        if n>=DH: s.e(f's_waitcnt vmcnt({DH-1+q(DH)})')
    def kload(s,t):
        if t and t%4==0: s.e(f's_mov_b32 m0, s{48+t//4}')
        s.thr(t)
        s.e(f'buffer_load_dwordx4 v{1+(t&3)}, s[36:39], s{54+t//4} offen offset:{(t&3)*1024} nt lds')
    def kv(s):
        P=s.P
        s.e('s_branch L_kv_main')
        s.e(f"""
        L_kv_hold:
        s_barrier
        s_movk_i32 s59, {C_PART1}
        s_mov_b32 s60, 3
        s_cmp_lt_u32 s2, 64
        s_cmovk_i32 s59, {C_ACT1}
        s_cmovk_i32 s60, 4
        s_cmp_ge_u32 s2, 252
        s_cmovk_i32 s59, {C_HOLD}
        v_mov_b32 v193, s59
        L_kv_hs:
        s_sleep 1
        ds_read_b32 v48, v193
        s_waitcnt lgkmcnt(0)
        v_cmp_gt_u32 vcc, s60, v48
        s_cbranch_vccnz L_kv_hs
        """)
        for t in range(P['D1']): s.kload(t)
        s.e('L_kv_main:')
        s.stamp(1)
        s.e(f"""
        s_add_u32 s40, s12, s52
        s_addc_u32 s41, s13, 0
        s_movk_i32 s42, 0x4000
        s_mov_b32 s43, 0x20000
        v_lshlrev_b32 v5, 10, v15
        v_lshl_add_u32 v5, v14, 4, v5       ; V voffset g*1024+i*16
        v_lshrrev_b32 v6, 3, v14
        v_lshlrev_b32 v6, 8, v6
        v_lshl_add_u32 v6, v15, 4, v6       ; q voffset (j>>3)*256+g*16
        v_lshlrev_b32 v13, 8, v14
        v_add_u32 v13, s48, v13
        v_lshl_add_u32 v7, v7, 4, v13
        v_lshl_add_u32 v8, v8, 4, v13
        v_lshl_add_u32 v9, v9, 4, v13
        v_lshl_add_u32 v10, v10, 4, v13
        v_and_b32 v13, 1, v0
        v_lshlrev_b32 v13, 4, v13
        v_mov_b32 v48, 0xffff
        v_lshlrev_b32 v48, v13, v48
        v_bfe_u32 v13, v0, 1, 2
        v_cmp_eq_u32 vcc, 0, v13
        v_cndmask_b32 v11, 0, v48, vcc
        v_cmp_eq_u32 vcc, 1, v13
        v_cndmask_b32 v12, 0, v48, vcc
        v_cmp_eq_u32 vcc, 3, v13
        v_cndmask_b32 v14, 0, v48, vcc
        v_cmp_eq_u32 vcc, 2, v13
        v_cndmask_b32 v13, 0, v48, vcc
        v_mov_b32 v15, 0
        v_mov_b32 v192, 1
        s_lshl_b32 s59, s7, 13
        s_lshl_b32 s60, s6, 9
        s_add_u32 s59, s59, s60
        s_add_u32 s59, s59, {W_QB}          ; q soffset
        s_lshl_b32 s61, s4, 5
        s_add_u32 s61, s61, s5
        """)
        s.ws_srd()
        s.e(f's_cmp_eq_u32 s53, {1 if P["HOLD"] else 2}')
        qloads=[f'buffer_load_dwordx4 v[{16+4*k}:{19+4*k}], v6, s[44:47], s59 offen offset:{64*k} sc1' for k in range(4)]
        for n in range(P['D1'],32):
            if n==P['N0']:
                s.lds_spin(C_OK,1,48,15)
                for x in qloads: s.e(x)
            if n<16: s.kload(n)
            else:
                k=n-16; s.thr(n)
                s.e(f'buffer_load_dwordx4 v[{64+4*k}:{67+4*k}], v5, s[40:43], s{54+k//4} offen offset:{(k&3)*256} nt')
            if n==P['LTRIG']: s.lds_signal(C_LATE,15,192)
            if n==15: s.stamp(2)
            if n==P['SIG']: s.lds_signal(C_KV,15,192)
            if n==29:
                assert P['DH']+4<14
                for T in range(4):
                    for st in range(4): s.e(f'ds_read_b128 v[{128+16*T+4*st}:{131+16*T+4*st}], v{7+st} offset:{T*4096}')
        s.stamp(10)
        s.e(f's_waitcnt vmcnt({32-P["N0"]})')
        s.e('v_max3_u32 v48, v16, v17, v18')
        for k in range(19,31,2): s.e(f'v_max3_u32 v48, v48, v{k}, v{k+1}')
        s.e('v_max_u32 v48, v48, v31\nv_cmp_eq_u32 vcc, -1, v48\ns_cbranch_vccz L_kv_qok')
        s.poll(qloads,[[16+4*k+j for j in range(4)] for k in range(4)],48,sleep=P['SLQ'])
        s.e('L_kv_qok:\ns_waitcnt lgkmcnt(0)')
        s.stamp(3)
        def site(): pass
        pend=[]
        for T in range(4):
            for st in range(4):
                c='0' if st==0 else f'v[{32+4*T}:{35+4*T}]'
                s.e(f'v_mfma_f32_16x16x32_bf16 v[{32+4*T}:{35+4*T}], v[{128+16*T+4*st}:{131+16*T+4*st}], v[{16+4*st}:{19+4*st}], {c}')
        sc=f2u(128**-0.5)
        s.e(f's_mov_b32 s48, {sc:#x}\ns_mov_b32 s49, {sc:#x}\ns_mov_b32 s50, {f2u(LOG2E):#x}\ns_mov_b32 s51, {f2u(LOG2E):#x}')
        s.round_pairs(32,16,48)
        for k in range(8): s.e(f'v_pk_mul_f32 v[{32+2*k}:{33+2*k}], v[{32+2*k}:{33+2*k}], s[48:49]')
        site()
        s.round_pairs(32,16,48)
        s.e('v_max3_f32 v48, v32, v33, v34')
        for k in range(35,47,2): s.e(f'v_max3_f32 v48, v48, v{k}, v{k+1}')
        s.e('''v_max_f32 v48, v48, v47
        v_mov_b32 v49, v48
        v_lshrrev_b32 v52, 3, v0
        v_and_b32 v52, 1, v52
        v_permlane16_swap_b32 v48, v49
        v_max_f32 v48, v48, v49
        v_mov_b32 v49, v48
        v_lshlrev_b32 v52, 4, v52            ; h*16 (h = i>>3)
        s_lshl_b32 s60, s3, 2
        v_permlane32_swap_b32 v48, v49
        v_max_f32 v48, v48, v49              ; m (head i>>3)
        v_add_u32 v53, s60, v52
        s_mov_b32 exec_lo, 0x101
        s_mov_b32 exec_hi, 0''')
        s.e(f'ds_write_b32 v53, v48 offset:{MX}')
        s.lds_signal(C_MX,15,192)
        s.e(f'v_mul_f32 v50, {f2u(-LOG2E):#x}, v48')
        site()
        for k in range(8): s.e(f'v_pk_fma_f32 v[{32+2*k}:{33+2*k}], v[{32+2*k}:{33+2*k}], s[50:51], v[50:51] op_sel_hi:[1,1,0]')
        for k in range(16): s.e(f'v_exp_f32 v{32+k}, v{32+k}')
        site()
        s.e('v_pk_add_f32 v[50:51], v[32:33], v[34:35]')
        for k in range(2,8): s.e(f'v_pk_add_f32 v[50:51], v[50:51], v[{32+2*k}:{33+2*k}]')
        s.e('''v_add_f32 v50, v50, v51
        v_mov_b32 v51, v50
        s_nop 0
        v_permlane16_swap_b32 v50, v51
        v_add_f32 v50, v50, v51
        v_mov_b32 v51, v50
        s_nop 0
        v_permlane32_swap_b32 v50, v51
        v_add_f32 v50, v50, v51              ; l (head i>>3)''')
        for k in range(16):
            s.e(f'v_cvt_pk_bf16_f32 v{32+k}, v{32+k}, v{32+k}')
            for dw in range(4): s.e(f'v_and_b32 v{128+4*k+dw}, v{32+k}, v{11+dw}')
            if k in(3,7,11): site()
        while pend: site()
        s.stamp(4)
        s.lds_spin(C_OK2,1,49,15)
        s.e('v_readfirstlane_b32 s53, v49')
        s.lds_spin(C_MX,4,49,15)
        s.e(f'''
        v_lshrrev_b32 v54, 5, v0
        v_lshlrev_b32 v54, 4, v54            ; h2*16 (h2 = lane>>5)
        v_add_u32 v55, s60, v54
        ds_read_b128 v[32:35], v52 offset:{MX}
        ds_read_b128 v[36:39], v54 offset:{MX}
        ds_read_b32 v40, v55 offset:{MX}
        s_lshl_b32 s60, s61, 6
        s_lshl_b32 s62, s3, 4
        s_add_u32 s60, s60, s62
        s_add_u32 s60, s60, {W_ML}
        s_waitcnt lgkmcnt(0)
        v_max3_f32 v32, v32, v33, v34
        v_max3_f32 v36, v36, v37, v38
        v_max_f32 v32, v32, v35
        v_max_f32 v36, v36, v39
        v_sub_f32 v48, v48, v32
        v_sub_f32 v40, v40, v36
        v_mul_f32 v48, s50, v48
        v_mul_f32 v40, s50, v40
        v_exp_f32 v48, v48
        v_exp_f32 v40, v40
        v_mul_f32 v33, v48, v50
        s_mov_b32 exec_lo, 0x101
        s_mov_b32 exec_hi, 0
        s_cmp_eq_u32 s53, 2
        s_cbranch_scc1 L_ml_loc
        buffer_store_dwordx2 v[32:33], v0, s[44:47], s60 offen sc1
        s_branch L_ml_done
        L_ml_loc:
        buffer_store_dwordx2 v[32:33], v0, s[44:47], s60 offen
        L_ml_done:
        s_mov_b64 exec, -1
        v_lshlrev_b32 v41, 4, v0
        s_lshl_b32 s62, s3, 10
        v_add_u32 v42, s62, v41
        s_lshl_b32 s60, s61, 10
        s_add_u32 s60, s60, {W_OP}
        ''')
        for k in range(16):
            if 16+k>=P['N0']: s.e(f's_waitcnt vmcnt({16-k})')
            c='0' if k==0 else 'v[44:47]'
            s.e(f'v_mfma_f32_16x16x32_bf16 v[44:47], v[{128+4*k}:{131+4*k}], v[{64+4*k}:{67+4*k}], {c}')
        s.stamp(5)
        s.e(f'''
        v_pk_mul_f32 v[44:45], v[44:45], v[40:41] op_sel_hi:[1,0]
        v_pk_mul_f32 v[46:47], v[46:47], v[40:41] op_sel_hi:[1,0]
        ds_write_b128 v42, v[44:47] offset:{OC}
        s_mov_b64 exec, 1
        ds_add_rtn_u32 v48, v15, v192 offset:{C_OC}
        s_waitcnt lgkmcnt(0)
        v_cmp_eq_u32 vcc, 3, v48
        s_mov_b64 exec, -1
        s_cbranch_vccz L_kv_tail
        ds_read_b128 v[32:35], v41 offset:{OC}
        ds_read_b128 v[36:39], v41 offset:{OC+1024}
        ds_read_b128 v[44:47], v41 offset:{OC+2048}
        ds_read_b128 v[48:51], v41 offset:{OC+3072}
        s_waitcnt lgkmcnt(2)
        v_pk_add_f32 v[32:33], v[32:33], v[36:37]
        v_pk_add_f32 v[34:35], v[34:35], v[38:39]
        s_waitcnt lgkmcnt(0)
        v_pk_add_f32 v[44:45], v[44:45], v[48:49]
        v_pk_add_f32 v[46:47], v[46:47], v[50:51]
        v_pk_add_f32 v[32:33], v[32:33], v[44:45]
        v_pk_add_f32 v[34:35], v[34:35], v[46:47]
        s_cmp_eq_u32 s53, 2
        s_cbranch_scc1 L_op_loc
        buffer_store_dwordx4 v[32:35], v41, s[44:47], s60 offen sc1
        s_branch L_kv_tail
        L_op_loc:
        buffer_store_dwordx4 v[32:35], v41, s[44:47], s60 offen
        L_kv_tail:
        ''')
        s.stamp(6)
        s.e('s_cmp_lt_u32 s5, 18\ns_cbranch_scc1 L_kv_ffn\ns_cmp_lt_u32 s5, 27\ns_cbranch_scc0 L_end')
        s.e(f'''
        v_lshrrev_b32 v48, 5, v0
        v_lshlrev_b32 v48, 4, v48            ; hkv'*16
        v_bfe_u32 v49, v0, 2, 2              ; sigma
        v_add_u32 v48, v48, v49
        v_lshlrev_b32 v48, 6, v48
        v_and_b32 v49, 3, v0
        v_lshl_add_u32 v48, v49, 4, v48
        v_bfe_u32 v49, v0, 4, 1
        v_lshl_add_u32 v48, v49, 3, v48
        s_lshl_b32 s60, s4, 5
        s_lshl_b32 s61, s3, 2
        s_add_u32 s60, s60, s61              ; x*32 + b*4
        s_lshl_b32 s61, s60, 6
        s_add_u32 s61, s61, {W_ML}
        s_lshl_b32 s60, s60, 10
        s_add_u32 s58, s60, {W_OP}
        s_add_u32 s59, s58, {16*1024}
        ''')
        s.poll(['buffer_load_dwordx2 v[50:51], v48, s[44:47], s61 offen sc1'],[[50,51]],49)
        s.e('v_mov_b32 v52, v50')
        for r in (1,2,4,8): s.e(f'v_max_f32_dpp v52, v52, v52 row_ror:{r} row_mask:0xf bank_mask:0xf')
        s.e('v_sub_f32 v52, v50, v52\nv_mul_f32 v52, s50, v52\nv_exp_f32 v52, v52\nv_mul_f32 v53, v52, v51')
        for r in (1,2,4,8): s.e(f'v_add_f32_dpp v53, v53, v53 row_ror:{r} row_mask:0xf bank_mask:0xf')
        s.e('v_rcp_f32 v53, v53\nv_lshrrev_b32 v54, 5, v0\nv_lshlrev_b32 v54, 6, v54\nv_mul_f32 v52, v52, v53')
        for hk in range(2):
            for sg in range(4): s.e(f'ds_bpermute_b32 v{16+2*(4*hk+sg)}, v54, v52 offset:{(hk*32+sg*4)*4}')
        s.e(f'''
        v_and_b32 v55, 15, v0
        v_lshlrev_b32 v55, 4, v55            ; 8j*2
        v_bfe_u32 v56, v0, 4, 1
        v_lshl_add_u32 v55, v56, 3, v55
        v_lshl_add_u32 v55, v54, 2, v55      ; + h*256
        s_mul_i32 s60, s3, {ACTS}
        v_add_u32 v55, s60, v55
        s_waitcnt lgkmcnt(0)
        ''')
        s.lds_spin(C_WIS,3,49,15)
        s.stamp(7)
        loads=[f'buffer_load_dwordx4 v[{64+4*i}:{67+4*i}], v41, s[44:47], s{58+i//4} offen offset:{(i&3)*1024} sc1' for i in range(8)]
        def body(i):
            a=32+4*(i//4); w=16+2*i; d=64+4*i
            for h in (0,2):
                if i&3==0: s.e(f'v_pk_mul_f32 v[{a+h}:{a+h+1}], v[{d+h}:{d+h+1}], v[{w}:{w+1}] op_sel_hi:[1,0]')
                else: s.e(f'v_pk_fma_f32 v[{a+h}:{a+h+1}], v[{d+h}:{d+h+1}], v[{w}:{w+1}], v[{a+h}:{a+h+1}] op_sel_hi:[1,0,1]')
        s.poll(loads,[[64+4*i+j for j in range(4)] for i in range(8)],49,body)
        s.e(f'''
        v_cvt_pk_bf16_f32 v32, v32, v33
        v_cvt_pk_bf16_f32 v33, v34, v35
        v_cvt_pk_bf16_f32 v36, v36, v37
        v_cvt_pk_bf16_f32 v37, v38, v39
        ds_write_b64 v55, v[32:33] offset:{ACT}
        ds_write_b64 v55, v[36:37] offset:{ACT+512}
        ''')
        s.lds_signal(C_ACT1,15,192)
        s.stamp(8)
        s.end()
        s.e('L_kv_ffn:')
        s.row_setup(3)
        if P['COOP']: s.e('s_and_b32 s60, s5, 1\ns_lshl_b32 s60, s60, 3\nv_xor_b32 v13, s60, v13')
        s.e(f'v_lshlrev_b32 v11, 4, v0\ns_mul_i32 s60, s4, 9216\ns_mul_i32 s61, s3, 2304\ns_add_u32 s60, s60, s61\ns_add_u32 s60, s60, {W_X1}')
        s.setexec(s.E48)
        s.mod_rows(3,4,28,40,52,12,63,sleep=8)
        s.lds_spin(C_WIS,3,52,15,sleep=1)
        s.stamp(7)
        s.poll([f'buffer_load_dwordx4 v[{16+4*k}:{19+4*k}], v11, s[44:47], s60 offen offset:{768*k} sc1' for k in range(3)],[[16+4*k+j for j in range(4)] for k in range(3)],52)
        s.stamp(8)
        s.layernorm(16,52)
        s.modulate(16,28,40,52,13)
        s.lds_signal(C_ACT2,15,192)
        s.stamp(9)
        s.end()

    def col_addrs(s):
        s.e(f"""
        v_and_b32 v5, 3, v0
        v_mul_u32_u24 v5, {ACTS}, v5         ; b*ACTS
        v_bfe_u32 v6, v0, 2, 1
        v_mul_u32_u24 v6, s58, v6
        v_lshl_add_u32 v5, v6, 1, v5
        v_lshrrev_b32 v6, 4, v0
        v_lshl_add_u32 v5, v6, 4, v5
        s_mul_i32 s54, s7, 192
        v_add_u32 v5, s54, v5
        v_mov_b32 v6, {ZERO}
        v_and_b32 v7, 8, v0
        v_cmp_eq_u32 vcc, 0, v7
        v_cndmask_b32 v2, v6, v5, vcc
        v_cndmask_b32 v3, v5, v6, vcc
        v_bfe_u32 v5, v0, 3, 1
        v_mul_u32_u24 v5, {PARTS}, v5
        v_lshrrev_b32 v6, 5, v0
        v_mul_u32_u24 v6, 144, v6
        v_add_u32 v5, v5, v6
        v_and_b32 v6, 7, v0
        v_lshl_add_u32 v5, v6, 4, v5
        s_mul_i32 s54, s7, {2*PARTS}
        v_add_u32 v4, s54, v5
        s_add_u32 s54, s58, s7
        s_cmp_eq_u32 s54, 258
        s_cselect_b32 s54, 0, 128
        v_add_u32 v8, s54, v2
        v_add_u32 v9, s54, v3
        s_mov_b32 s60, 0x05040100
        s_mov_b32 s61, 0x07060302
        """)
    def col_voff(s):
        s.e(f"""
        v_bfe_u32 v5, v0, 3, 1               ; kappa
        v_mul_u32_u24 v5, s58, v5
        v_lshrrev_b32 v6, 4, v0
        v_lshl_add_u32 v5, v6, 3, v5         ; ksz*kappa+8g
        v_mul_u32_u24 v1, s56, v5
        v_and_b32 v5, 7, v0
        v_lshl_add_u32 v1, v5, 4, v1
        s_mul_i32 s52, s7, 96
        s_mul_i32 s52, s52, s56
        s_add_u32 s52, s52, s53
        s_mul_i32 s57, s56, 25
        """)
    def col_load(s,n):
        s.e(f'buffer_load_dwordx4 v[{96+4*n}:{99+4*n}], v1, s[36:39], s52 offen nt')
        if n<23: s.e(f's_add_u32 s52, s52, s{57 if n%8==7 else 56}')
    def col_perms(s,younger=0):
        for gq in range(3):
            s.e(f's_waitcnt vmcnt({16-8*gq+younger})')
            s.perms(96+32*gq,64+32*gq)
    def col_mfma(s,cact,cpart,nact=4,third_off=(8,9),GB=(64,96,128)):
        s.lds_spin(cact,nact,5,15)
        for st in range(3):
            off=64*st if st<2 else third_off
            if isinstance(off,int):
                s.e(f'ds_read_b128 v[{16+8*st}:{19+8*st}], v2 offset:{off}\nds_read_b128 v[{20+8*st}:{23+8*st}], v3 offset:{off}')
            else:
                s.e(f'ds_read_b128 v[{16+8*st}:{19+8*st}], v{off[0]}\nds_read_b128 v[{20+8*st}:{23+8*st}], v{off[1]}')
        for st in range(3):
            s.e(f's_waitcnt lgkmcnt({4-2*st})')
            for gm in range(2):
                for a in range(4):
                    c='0' if (st==0 and gm==0) else f'v[{40+4*a}:{43+4*a}]'
                    b=GB[st]+4*(2*a+gm)
                    s.e(f'v_mfma_f32_16x16x32_bf16 v[{40+4*a}:{43+4*a}], v[{16+8*st+4*gm}:{19+8*st+4*gm}], v[{b}:{b+3}], {c}')
        s.setexec('0xff0000ffff0000ff')
        for a in range(4): s.e(f'ds_write_b128 v4, v[{40+4*a}:{43+4*a}] offset:{PART+a*288}')
        s.lds_signal(cpart,15,14)
    def part_sum(s,vaddr,r):
        for i in range(6): s.e(f'ds_read_b128 v[{r+4*i}:{r+4*i+3}], v{vaddr} offset:{PART+i*PARTS}')
        for i in range(1,6):
            s.e(f's_waitcnt lgkmcnt({5-i})')
            s.e(f'v_pk_add_f32 v[{r}:{r+1}], v[{r}:{r+1}], v[{r+4*i}:{r+4*i+1}]\nv_pk_add_f32 v[{r+2}:{r+3}], v[{r+2}:{r+3}], v[{r+4*i+2}:{r+4*i+3}]')
    def part_addr(s,v,t):
        s.e(f'v_and_b32 v{v}, 7, v0\nv_mul_u32_u24 v{v}, 144, v{v}\nv_lshrrev_b32 v{t}, 3, v0\nv_lshl_add_u32 v{v}, v{t}, 4, v{v}')
    def munit(s):
        s.e('''
        s_movk_i32 s6, 99
        s_sub_u32 s52, s2, 64
        s_cmp_lt_u32 s52, 18
        s_cselect_b32 s6, s52, s6
        s_sub_u32 s52, s2, 216
        s_add_u32 s53, s52, 18
        s_cmp_lt_u32 s52, 36
        s_cselect_b32 s6, s53, s6
        ''')
    def w_start(s):
        P=s.P
        s.e(f"""
        L_w:
        s_sub_u32 s7, s3, 4
        v_mov_b32 v15, 0
        v_mov_b32 v14, 1
        s_movk_i32 s58, 288
        s_cmp_lt_u32 s2, 82
        s_cbranch_scc0 L_w_ne
        s_lshl_b32 s53, s4, 3
        s_add_u32 s53, s53, s5
        s_sub_u32 s6, s2, 64
        s_cmp_lt_u32 s2, 64
        s_cselect_b32 s53, s53, s6
        s_movk_i32 s56, 6912
        s_cmovk_i32 s56, 8192
        s_lshl_b32 s53, s53, 7
        """)
        s.col_voff()
        s.row_setup(7)
        s.e(f"""
        s_mul_i32 s38, s56, 576
        s_mov_b32 s39, 0x20000
        s_movk_i32 s50, 4608
        s_mov_b32 s51, 0x20000
        s_cmp_lt_u32 s2, 64
        s_waitcnt lgkmcnt(0)
        s_cselect_b64 s[36:37], s[14:15], s[28:29]
        s_cselect_b64 s[48:49], s[8:9], s[26:27]
        """)
        s.row_loads(52)
        for n in range(24):
            s.col_load(n)
            if n==P['NB']-1: s.e('s_barrier')
        s.e('s_branch L_w_col\nL_w_ne:\ns_barrier\ns_cmp_ge_u32 s2, 252\ns_cbranch_scc1 L_w_idle\ns_branch L_w_late')
    def wwave(s):
        P=s.P
        s.e("""
        L_w_late:
        s_cmp_lt_u32 s2, 144
        s_cbranch_scc1 L_w_ffn0
        s_sub_u32 s53, s5, 18
        s_mul_i32 s54, s4, 4608
        s_add_u32 s53, s53, s54
        s_sub_u32 s6, s2, 198                ; M2 unit
        s_cmp_lt_u32 s2, 216
        s_cselect_b32 s53, s53, s6
        s_movk_i32 s56, 6912
        s_cmovk_i32 s56, 1152
        s_cmovk_i32 s58, 256
        s_movk_i32 s38, 576
        s_cmovk_i32 s38, 4096
        s_lshl_b32 s53, s53, 7
        """)
        s.col_voff()
        s.row_setup(7)
        s.e(f"""
        s_mul_i32 s38, s56, s38
        s_mov_b32 s39, 0x20000
        s_cmp_lt_u32 s2, 216
        s_waitcnt lgkmcnt(0)
        s_cselect_b64 s[36:37], s[16:17], s[28:29]
        """)
        s.srd(48,26,4608)
        s.row_loads(52)
        s.lds_spin(C_LATE,4,5,15,sleep=2)
        s.stamp(1)
        for n in range(24):
            if n==16: s.e('s_add_u32 s54, s58, s7\ns_cmp_eq_u32 s54, 258\ns_cselect_b32 s52, 0x40000000, s52')
            if n>=P['DLATE']: s.e(f's_waitcnt vmcnt({P["DLATE"]-1})')
            s.col_load(n)
        s.lds_signal(C_WIS,15,14)
        s.e('L_w_col:')
        s.stamp(11)
        s.col_addrs()
        s.ws_srd()
        s.e('s_waitcnt vmcnt(24)\ns_cmp_eq_u32 s56, 1152\ns_cbranch_scc1 L_w_pm')
        s.setexec(s.E48)
        s.e('s_cmp_lt_u32 s2, 64\ns_cbranch_scc1 L_w_ln')
        s.silu_row(52,16,28,13)
        s.lds_signal(C_ACT1,15,14)
        s.e('s_branch L_w_pm\nL_w_ln:')
        for k in range(6): s.unpack(52+k,16+2*k,17+2*k)
        s.layernorm(16,52)
        s.setexec('-1')
        s.e('L_w_pm:')
        s.col_perms()
        s.stamp(2)
        s.e('s_cmp_lt_u32 s2, 64\ns_cbranch_scc0 L_w_mm')
        s.lds_spin(C_OK,1,5,15)
        s.setexec(s.E48)
        s.mod_rows(0,1,28,40,52,12,63,sleep=P['SLM'])
        s.stamp(3)
        s.modulate(16,28,40,52,13)
        s.lds_signal(C_ACT1,15,14)
        s.e('L_w_mm:')
        s.col_mfma(C_ACT1,C_PART1)
        s.stamp(4)
        s.e('s_cmp_lt_u32 s2, 144\ns_cbranch_scc0 L_end\ns_branch L_w_ffn')
        s.e('L_w_ffn0:\ns_waitcnt lgkmcnt(0)')
        s.col_addrs()
        s.e('L_w_ffn:')
        s.ws_srd()
        s.srd(40,24,4608*1152)
        s.e(f'''
        s_mul_i32 s6, s4, 18
        s_add_u32 s6, s6, s5                 ; f
        v_bfe_u32 v5, v0, 3, 1
        v_mul_u32_u24 v5, 288, v5
        v_lshrrev_b32 v6, 4, v0
        v_lshl_add_u32 v5, v6, 3, v5
        v_mul_u32_u24 v5, 9216, v5
        v_and_b32 v7, 3, v0
        v_lshl_add_u32 v5, v7, 4, v5
        s_mul_i32 s52, s7, {96*9216}
        s_lshl_b32 s53, s6, 6
        s_add_u32 s52, s52, s53
        v_add_u32 v5, s52, v5
        v_and_b32 v7, 4, v0
        v_cmp_eq_u32 vcc, 0, v7
        v_mov_b32 v61, s22
        v_mov_b32 v62, s20
        v_cndmask_b32 v10, v61, v62, vcc
        v_mov_b32 v61, s23
        v_mov_b32 v62, s21
        v_cndmask_b32 v11, v61, v62, vcc
        v_add_co_u32 v10, vcc, v10, v5
        v_addc_co_u32 v11, vcc, 0, v11, vcc
        s_movk_i32 s54, 9216
        s_mov_b32 s55, 0
        s_mov_b32 s57, 0
        s_and_b32 s56, s5, {1 if P['COOP'] else 0}
        s_xor_b32 s56, s56, 1
        s_mul_i32 s56, s56, {4*9216}
        v_lshl_add_u64 v[62:63], v[10:11], 0, s[56:57]
        s_xor_b32 s56, s56, {4*9216}
        v_lshl_add_u64 v[10:11], v[10:11], 0, s[56:57]
        s_mov_b32 s56, {(29 if P['COOP'] else 25)*9216}
        v_mul_u32_u24 v1, {8*1152}, v6
        v_and_b32 v7, 15, v0
        v_lshl_add_u32 v1, v7, 4, v1
        s_mul_i32 s52, s6, {32*1152}
        s_mul_i32 s53, s7, 384
        s_add_u32 s52, s52, s53
        s_add_u32 s53, s52, 4608
        v_bfe_u32 v5, v0, 3, 1
        v_lshl_add_u32 v5, v5, 3, v6
        v_mul_u32_u24 v12, 18432, v5
        v_and_b32 v5, 7, v0
        v_lshl_add_u32 v12, v5, 4, v12       ; S5 voffset
        s_mul_i32 s48, s7, {24*18432}
        s_lshl_b32 s49, s6, 7
        s_add_u32 s48, s48, s49
        s_add_u32 s48, s48, {W_S5}
        s_add_u32 s49, s48, {4*18432}
        s_add_u32 s50, s48, {16*18432}
        s_add_u32 s51, s48, {20*18432}
        ''')
        s.part_addr(13,5)
        s.e(f'''
        s_lshl_b32 s58, s7, 8
        s_add_u32 s58, s58, {HH}
        v_lshrrev_b32 v5, 5, v0
        v_lshlrev_b32 v5, 7, v5
        v_and_b32 v7, 31, v0
        v_lshl_add_u32 v5, v7, 1, v5
        v_add_u32 v60, s58, v5
        v_and_b32 v5, 3, v0
        v_lshlrev_b32 v5, 6, v5
        v_lshl_add_u32 v5, v6, 4, v5
        v_add_u32 v5, s58, v5
        v_bfe_u32 v7, v0, 2, 2
        v_mov_b32 v61, {ZERO}
        ''')
        for gm in range(4): s.e(f'v_cmp_eq_u32 vcc, {gm}, v7\nv_cndmask_b32 v{56+gm}, v61, v5, vcc')
        s.lds_spin(C_KV,4,5,15,sleep=2)
        s.stamp(5)
        g1=[('g',8*st+r) for st in range(3) for r in range(4)]; g2=[('g',8*st+r) for st in range(3) for r in range(4,8)]
        dn=[('d',n) for n in range(16)]
        ops=[]
        if P['COOP']:
            for k in range(12):
                ops.append(g1[k])
                if k>=2:
                    ops+=dn[:2 if (k%2==0 or k==11) else 1]; dn=dn[2 if (k%2==0 or k==11) else 1:]
            ops+=dn+g2
        else: ops=[('g',n) for n in range(24)]+dn
        lines=lambda o: 16 if o[0]=='g' else (8 if o[1]<8 else 4)
        half=False; prevrow=0
        for k,o in enumerate(ops):
            tot=lines(o); keep=0
            for p in reversed(ops[:k]):
                if tot+lines(p)>P['FL']: break
                tot+=lines(p); keep+=1
            if keep<k: s.e(f's_waitcnt vmcnt({keep})')
            wanth=(o[0]=='d' and o[1]>=8)
            if o[0]=='g':
                if half: s.setexec('-1'); half=False
                n=o[1]; row=32*(n//8)+(n&3 if P['COOP'] else n%8)
                if P['COOP'] and n==4: s.e('v_mov_b32 v10, v62\nv_mov_b32 v11, v63'); prevrow=0
                d=row-prevrow; prevrow=row
                if d: s.e(f'v_lshl_add_u64 v[10:11], v[10:11], 0, s[{54 if d==1 else 56}:{55 if d==1 else 57}]')
                s.e(f'global_load_dwordx4 v[{96+4*n}:{99+4*n}], v[10:11], off nt')
            else:
                if wanth!=half: s.setexec('0x00ff00ff00ff00ff' if wanth else '-1'); half=wanth
                n=o[1]; rho=n&7
                s.e(f'buffer_load_dwordx4 v[{192+4*n}:{195+4*n}], v1, s[40:43], s{52+rho//4} offen offset:{(rho&3)*1152+(256 if n>=8 else 0)} nt')
            if k==P['LNG']:
                s.lds_signal(C_WIS,15,14,restore='0x00ff00ff00ff00ff' if half else '-1')
        if half: s.setexec('-1')
        s.stamp(6)
        last=lambda pred: len(ops)-1-max(k for k,o in enumerate(ops) if pred(o))
        if P['COOP']:
            s.e(f's_waitcnt vmcnt({last(lambda o:o[0]=="d")})'); s.perms(192,64); s.perms(224,192)
            s.stamp(7)
            for gq,dst in ((0,224),(1,96),(2,128)):
                s.e(f's_waitcnt vmcnt({last(lambda o:o[0]=="g" and o[1]//8==gq)})'); s.perms(96+32*gq,dst)
            GB=[224,96,128]; DB=[64,192]
        else:
            s.col_perms(younger=16)
            s.stamp(7)
            s.e('s_waitcnt vmcnt(8)'); s.perms(192,160)
            s.e('s_waitcnt vmcnt(0)'); s.perms(224,192)
            GB=[64,96,128]; DB=[160,192]
        s.stamp(8)
        s.col_mfma(C_ACT2,C_PART2,GB=GB)
        s.stamp(9)
        s.lds_spin(C_PART2,3,5,15)
        s.part_sum(13,16)
        c0=-2*0.7978845608028654*LOG2E; c1=c0*0.044715
        s.round_pairs(16,4,20)
        s.e(f'''
        v_mov_b32 v22, {f2u(c0):#x}
        v_permlane32_swap_b32 v16, v18
        v_permlane32_swap_b32 v17, v19
        v_mul_f32 v20, v16, v16
        v_mul_f32 v21, v17, v17
        v_fmamk_f32 v20, v20, {f2u(c1):#x}, v22
        v_fmamk_f32 v21, v21, {f2u(c1):#x}, v22
        v_mul_f32 v20, v20, v16
        v_mul_f32 v21, v21, v17
        v_exp_f32 v20, v20
        v_exp_f32 v21, v21
        v_add_f32 v20, 1.0, v20
        v_add_f32 v21, 1.0, v21
        v_rcp_f32 v20, v20
        v_rcp_f32 v21, v21
        v_pk_mul_f32 v[16:17], v[16:17], v[20:21]
        v_cvt_pk_bf16_f32 v20, v16, v17
        v_lshlrev_b32 v16, 16, v20
        v_and_b32 v17, 0xffff0000, v20
        v_pk_mul_f32 v[16:17], v[16:17], v[18:19]
        v_cvt_pk_bf16_f32 v20, v16, v17
        ds_write_b16 v60, v20
        ds_write_b16_d16_hi v60, v20 offset:64
        ''')
        for gm in range(4): s.e(f'ds_read_b128 v[{24+4*gm}:{27+4*gm}], v{56+gm}')
        for gm in range(4):
            s.e(f's_waitcnt lgkmcnt({3-gm})')
            for grp in range(2):
                for a in range(2):
                    acc=40+8*grp+4*a; b=DB[grp]+4*(4*a+gm)
                    c='0' if gm==0 else f'v[{acc}:{acc+3}]'
                    s.e(f'v_mfma_f32_16x16x32_bf16 v[{acc}:{acc+3}], v[{24+4*gm}:{27+4*gm}], v[{b}:{b+3}], {c}')
        s.e('buffer_store_dwordx4 v[40:43], v12, s[44:47], s48 offen sc1\nbuffer_store_dwordx4 v[44:47], v12, s[44:47], s49 offen sc1')
        s.setexec('0x00ff00ff00ff00ff')
        s.e('buffer_store_dwordx4 v[48:51], v12, s[44:47], s50 offen sc1\nbuffer_store_dwordx4 v[52:55], v12, s[44:47], s51 offen sc1')
        s.setexec('-1')
        s.stamp(10)
        s.end()

    def go_wait(s):
        l=s.lab('Lgo'); d=s.lab('Lgd')
        s.e(f"""
        s_mov_b32 s62, {BOUND}
        s_mov_b64 exec, 1
        {l}:
        s_sub_u32 s62, s62, 1
        s_cbranch_scc1 {d}
        global_load_dwordx4 v[8:11], v15, s[32:33] sc1
        s_waitcnt vmcnt(0)
        v_min3_u32 v5, v8, v9, v10
        v_min_u32 v5, v5, v11
        v_cmp_ne_u32 vcc, 0, v5
        s_cbranch_vccnz {d}
        s_sleep {s.P['SL1']}
        s_branch {l}
        {d}:
        ds_write_b32 v15, v14 offset:{C_OK}
        s_mov_b64 exec, -1
        """)
    def flag_set(s):
        s.e(f"""
        s_waitcnt vmcnt(0)
        s_mov_b64 exec, 1
        s_lshl_b32 s52, s4, 5
        s_add_u32 s52, s52, s5
        s_lshl_b32 s52, s52, 4
        v_mov_b32 v5, s18
        buffer_store_dword v5, v15, s[44:47], s52 offen sc1
        s_mov_b64 exec, -1
        """)
    def all_wait(s):
        l=s.lab('Lfw'); d=s.lab('Lfd')
        s.e(f"""
        s_mov_b32 s62, {BOUND}
        s_mov_b64 exec, 1
        {l}:
        s_sub_u32 s62, s62, 1
        s_cbranch_scc1 {d}
        global_load_dword v5, v15, s[32:33] offset:128 sc1
        s_waitcnt vmcnt(0)
        v_cmp_ne_u32 vcc, 0, v5
        s_cbranch_vccnz {d}
        s_sleep {s.P['SL2']}
        s_branch {l}
        {d}:
        v_lshrrev_b32 v5, s4, v5
        v_and_b32 v5, 1, v5
        v_add_u32 v5, 1, v5
        ds_write_b32 v15, v5 offset:{C_OK2}
        v_readfirstlane_b32 s19, v5
        s_mov_b64 exec, -1
        """)
    def aggregate(s):
        l=s.lab('Lag'); d=s.lab('Lad')
        s.e(f"""
        v_lshlrev_b32 v6, 6, v0
        s_mov_b32 s62, {BOUND}
        {l}:
        s_sub_u32 s62, s62, 1
        s_cbranch_scc1 {d}
        s_sleep 4
        buffer_load_dword v8, v6, s[44:47], 0 offen sc1
        buffer_load_dword v9, v6, s[44:47], 0 offen offset:16 sc1
        buffer_load_dword v10, v6, s[44:47], 0 offen offset:32 sc1
        buffer_load_dword v11, v6, s[44:47], 0 offen offset:48 sc1
        s_waitcnt vmcnt(0)
        v_max3_u32 v5, v8, v9, v10
        v_max_u32 v5, v5, v11
        v_cmp_eq_u32 vcc, -1, v5
        s_cbranch_vccnz {l}
        {d}:
        v_min3_u32 v7, v8, v9, v10
        v_min_u32 v7, v7, v11
        v_mov_b32 v8, v5
        s_nop 1
        v_max_u32_dpp v5, v5, v5 quad_perm:[1,0,3,2] row_mask:0xf bank_mask:0xf
        s_nop 1
        v_max_u32_dpp v5, v5, v5 quad_perm:[2,3,0,1] row_mask:0xf bank_mask:0xf
        s_nop 1
        v_max_u32_dpp v5, v5, v5 row_half_mirror row_mask:0xf bank_mask:0xf
        v_cmp_ne_u32 vcc, v5, v7
        s_movk_i32 s54, 0x100
        """)
        for x in range(8):
            s.e(f's_lshr_b64 s[52:53], vcc, {8*x}\ns_and_b32 s52, s52, 0xff\ns_cselect_b32 s52, 0, {1<<x}\ns_or_b32 s54, s54, s52')
        s.e('v_mov_b32 v5, s54\ns_mov_b64 exec, 1\nglobal_store_dword v15, v5, s[32:33] offset:128 sc1\ns_mov_b64 exec, -1')
    def urgent_clear(s):
        s.e(f"""
        s_sub_u32 s52, s2, 252
        s_lshl_b32 s52, s52, 2
        s_add_u32 s52, s52, s3
        s_sub_u32 s52, s52, 4
        s_lshl_b32 s52, s52, 12
        """)
        for i in range(4): s.e(f'buffer_store_dwordx4 v[16:19], v1, s[44:47], s52 offen offset:{i*1024} sc1')
        s.e(f"""
        s_waitcnt vmcnt(0)
        s_mov_b64 exec, 1
        ds_add_rtn_u32 v5, v15, v14 offset:{C_ACT1}
        s_sub_u32 s52, s2, 252
        s_lshl_b32 s52, s52, 2
        v_mov_b32 v6, s52
        s_waitcnt lgkmcnt(0)
        v_cmp_eq_u32 vcc, 3, v5
        s_and_b64 exec, exec, vcc
        """)
        l=s.lab('Luc')
        s.e(f's_cbranch_execz {l}\nglobal_store_dword v6, v14, s[32:33] sc1\nv_mov_b32 v5, 3\nds_write_b32 v15, v5 offset:{C_HOLD}\n{l}:\ns_mov_b64 exec, -1')
    def publish_bf16(s,rowstride):
        s.part_addr(6,5)
        s.e(f'''
        v_lshlrev_b32 v7, 1, v0
        v_lshrrev_b32 v5, 3, v0
        v_mul_u32_u24 v5, {rowstride}, v5
        v_and_b32 v8, 7, v0
        v_lshl_add_u32 v8, v8, 4, v5
        ''')
        s.lds_spin(C_PART1,3,5,15)
        s.part_sum(6,16)
        s.e(f'''
        v_cvt_pk_bf16_f32 v16, v16, v17
        v_cvt_pk_bf16_f32 v17, v18, v19
        ds_write_b16 v7, v16 offset:{TR}
        ds_write_b16_d16_hi v7, v16 offset:{TR+128}
        ds_write_b16 v7, v17 offset:{TR+256}
        ds_write_b16_d16_hi v7, v17 offset:{TR+384}
        s_mov_b32 exec_hi, 0
        ds_read_b128 v[16:19], v1 offset:{TR}
        s_waitcnt lgkmcnt(0)
        buffer_store_dwordx4 v[16:19], v8, s[44:47], s55 offen sc1
        s_mov_b64 exec, -1
        ''')
    def comm(s):
        P=s.P
        s.e("""
        L_w_idle:
        v_lshlrev_b32 v1, 4, v0
        L_comm:
        v_mov_b32 v16, -1
        v_mov_b32 v17, -1
        v_mov_b32 v18, -1
        v_mov_b32 v19, -1
        s_waitcnt lgkmcnt(0)
        """)
        s.ws_srd()
        s.e('s_cmp_lt_u32 s2, 252\ns_cbranch_scc1 L_c_nu')
        s.urgent_clear()
        s.e('s_cmp_eq_u32 s3, 7\ns_cbranch_scc0 L_end\nL_c_nu:')
        s.munit()
        s.e(f"""
        s_mul_i32 s56, s2, {LCS}
        s_add_u32 s56, s56, {W_LC-82*LCS+(1<<32)}
        s_add_u32 s57, s56, 4096
        s_add_u32 s58, s56, 8192
        s_mov_b32 s7, 3
        s_getreg_b32 s18, hwreg(HW_REG_XCC_ID, 0, 4)
        """)
        s.row_setup(7)
        def lc_clear():
            for i in range(0 if P['NOCLR'] else 10): s.e(f'buffer_store_dwordx4 v[16:19], v1, s[44:47], s{56+i//4} offen offset:{(i&3)*1024} sc1')
        s.stamp(1)
        s.e("""
        s_cmp_lt_u32 s2, 64
        s_cbranch_scc1 L_c_q
        s_cmp_lt_u32 s6, 54
        s_cbranch_scc1 L_c_m
        """)
        s.go_wait()
        s.stamp(2)
        lc_clear()
        s.flag_set()
        s.stamp(12)
        s.e('s_cmp_eq_u32 s2, 255\ns_cbranch_scc0 L_c_na')
        s.aggregate()
        s.e('L_c_na:')
        s.all_wait()
        s.stamp(3)
        s.e('s_sub_u32 s52, s2, 144\ns_cmp_lt_u32 s52, 72\ns_cbranch_scc1 L_c_wo')
        s.end()
        s.e('L_c_m:')
        s.srd(48,26,4608)
        s.row_loads(52)
        s.e(f"""
        s_mul_i32 s52, s6, 7282
        s_lshr_b32 s52, s52, 16
        s_mul_i32 s53, s52, 9
        s_sub_u32 s53, s6, s53
        s_mul_i32 s55, s52, 4608
        s_lshl_b32 s53, s53, 7
        s_add_u32 s55, s55, s53
        s_add_u32 s55, s55, {W_MOD}
        s_waitcnt vmcnt(0)
        """)
        s.setexec(s.E48)
        s.silu_row(52,20,32,13)
        s.lds_signal(C_ACT1,15,14)
        s.go_wait()
        s.stamp(2)
        s.e('s_cmp_lt_u32 s6, 18\ns_cbranch_scc1 L_c_m0')
        lc_clear()
        s.e('L_c_m0:')
        s.flag_set()
        s.e('s_cmp_lt_u32 s6, 18\ns_cbranch_scc1 L_c_m1')
        s.all_wait()
        s.stamp(3)
        s.e('L_c_m1:')
        s.publish_bf16(1152)
        s.stamp(4)
        s.e('s_cmp_lt_u32 s6, 18\ns_cbranch_scc0 L_end')
        s.e('L_c_aw:')
        s.all_wait()
        s.stamp(3)
        s.end()
        s.e('L_c_q:')
        s.srd(48,8,4608)
        s.row_loads(52)
        s.e('s_waitcnt vmcnt(0)')
        s.setexec(s.E48)
        for k in range(6): s.unpack(52+k,64+2*k,65+2*k)
        s.layernorm(64,52)
        s.go_wait()
        s.flag_set()
        s.stamp(2)
        s.setexec(s.E48)
        s.mod_rows(0,1,28,40,52,12,63,sleep=P['SLM'])
        s.stamp(5)
        s.modulate(64,28,40,52,13)
        s.lds_signal(C_ACT1,15,14)
        s.e(f's_lshl_b32 s55, s4, 3\ns_add_u32 s55, s55, s5\ns_lshl_b32 s55, s55, 7\ns_add_u32 s55, s55, {W_QB}')
        s.publish_bf16(8192)
        s.stamp(4)
        s.e('s_branch L_c_aw')
        s.e('L_c_wo:')
        s.srd(48,8,4608)
        s.e(f'''
        s_sub_u32 s6, s5, 18                 ; cb
        s_lshl_b32 s52, s6, 7
        v_lshlrev_b32 v5, 1, v0
        v_and_b32 v5, 0x7c, v5
        v_and_b32 v7, 1, v0
        v_lshlrev_b32 v7, 4, v7
        v_sub_u32 v7, 16, v7
        s_add_u32 s58, s52, {W_MOD+2*4608}
        s_add_u32 s59, s52, {W_MOD+5*4608}
        ''')
        for b in range(4): s.e(f'buffer_load_dword v{40+b}, v5, s[48:51], s52 offen offset:{1152*b}')
        loads=[f'buffer_load_dword v{44+b}, v5, s[44:47], s58 offen offset:{1152*b} sc1' for b in range(4)]
        loads+=[f'buffer_load_dword v{48+b}, v5, s[44:47], s59 offen offset:{1152*b} sc1' for b in range(4)]
        s.poll(loads,[[44+i] for i in range(8)],9,sleep=4)
        for r in range(40,52): s.e(f'v_lshlrev_b32 v{r}, v7, v{r}\nv_and_b32 v{r}, 0xffff0000, v{r}')
        s.part_addr(6,5)
        s.e(f'''
        ds_write_b128 v1, v[48:51] offset:{TR+1024}
        s_lshl_b32 s52, s6, 13
        s_add_u32 s56, s52, {W_S4}
        s_add_u32 s57, s56, 4096
        s_lshl_b32 s52, s4, 10
        s_add_u32 s55, s56, s52
        s_mul_i32 s52, s4, 9216
        s_lshl_b32 s53, s6, 8
        s_add_u32 s52, s52, s53
        s_add_u32 s58, s52, {W_X1}
        s_add_u32 s59, s58, 4608
        v_lshlrev_b32 v7, 2, v0
        v_and_b32 v9, 7, v0
        v_lshlrev_b32 v9, 3, v9
        v_add_u32 v9, s4, v9                 ; 8*jj + x
        v_lshrrev_b32 v10, 4, v0             ; b
        v_lshlrev_b32 v11, 4, v9
        v_lshl_add_u32 v11, v10, 2, v11
        v_mul_u32_u24 v10, 1152, v10
        v_lshl_add_u32 v10, v9, 1, v10
        ''')
        s.stamp(5)
        s.lds_spin(C_PART1,3,5,15)
        s.part_sum(6,16)
        s.e('buffer_store_dwordx4 v[16:19], v1, s[44:47], s55 offen sc1')
        s.stamp(6)
        loads=[f'buffer_load_dwordx4 v[{64+4*i}:{67+4*i}], v1, s[44:47], s{56+i//4} offen offset:{(i&3)*1024} sc1' for i in range(8)]
        def acc(i,base=64,a=20):
            d=base+4*i
            if i==1: s.e(f'v_pk_add_f32 v[{a}:{a+1}], v[{base}:{base+1}], v[{d}:{d+1}]\nv_pk_add_f32 v[{a+2}:{a+3}], v[{base+2}:{base+3}], v[{d+2}:{d+3}]')
            elif i>1: s.e(f'v_pk_add_f32 v[{a}:{a+1}], v[{a}:{a+1}], v[{d}:{d+1}]\nv_pk_add_f32 v[{a+2}:{a+3}], v[{a+2}:{a+3}], v[{d+2}:{d+3}]')
        s.poll(loads,[[64+4*i+j for j in range(4)] for i in range(8)],5,acc)
        s.stamp(7)
        s.round_pairs(20,4,24)
        s.e('v_pk_mul_f32 v[20:21], v[20:21], v[44:45]\nv_pk_mul_f32 v[22:23], v[22:23], v[46:47]')
        s.round_pairs(20,4,24)
        s.e('v_pk_add_f32 v[20:21], v[20:21], v[40:41]\nv_pk_add_f32 v[22:23], v[22:23], v[42:43]')
        s.round_pairs(20,4,24)
        s.e('s_cmp_eq_u32 s19, 2\ns_cbranch_scc1 L_x1_loc')
        for b in range(4): s.e(f'buffer_store_dword v{20+b}, v7, s[44:47], s{58+b//2} offen offset:{(b&1)*2304} sc1')
        s.e('s_branch L_x1_done\nL_x1_loc:')
        for b in range(4): s.e(f'buffer_store_dword v{20+b}, v7, s[44:47], s{58+b//2} offen offset:{(b&1)*2304}')
        s.e('L_x1_done:')
        s.stamp(8)
        s.srd(48,30,4608)
        s.e(f'''
        ds_write_b128 v1, v[20:23] offset:{TR}
        ds_read_b32 v12, v11 offset:{TR}
        ds_read_b32 v13, v11 offset:{TR+1024}
        s_lshl_b32 s52, s6, 3
        s_add_u32 s52, s52, s4
        s_mul_i32 s52, s52, 18432
        s_add_u32 s52, s52, {W_S5}
        s_add_u32 s53, s52, 4096
        s_add_u32 s54, s52, 8192
        s_add_u32 s55, s52, 12288
        s_add_u32 s56, s52, 16384
        s_lshl_b32 s57, s6, 7
        s_waitcnt lgkmcnt(0)
        ''')
        loads=[f'buffer_load_dwordx4 v[{64+4*i}:{67+4*i}], v1, s[44:47], s{52+i//4} offen offset:{(i&3)*1024} sc1' for i in range(18)]
        if P['HINT']:
            s.e('s_mov_b32 exec_lo, 0xff\ns_mov_b32 exec_hi, 0')
            s.poll(loads[:1],[[64,65,66,67]],5)
            s.e('s_mov_b64 exec, -1')
        s.stamp(9)
        s.poll(loads,[[64+4*i+j for j in range(4)] for i in range(18)],5,acc)
        s.stamp(10)
        s.e('''
        v_permlane32_swap_b32 v20, v22
        v_permlane32_swap_b32 v21, v23
        v_pk_add_f32 v[20:21], v[20:21], v[22:23]
        v_permlane16_swap_b32 v20, v21
        v_add_f32 v20, v20, v21
        v_add_f32_dpp v20, v20, v20 row_ror:8 row_mask:0xf bank_mask:0xf
        v_cvt_pk_bf16_f32 v20, v20, v20
        v_lshlrev_b32 v20, 16, v20
        v_mul_f32 v20, v20, v13
        v_cvt_pk_bf16_f32 v20, v20, v20
        v_lshlrev_b32 v20, 16, v20
        v_add_f32 v20, v20, v12
        v_cvt_pk_bf16_f32 v20, v20, v20
        s_mov_b32 exec_lo, 0x00ff00ff
        s_mov_b32 exec_hi, 0x00ff00ff
        buffer_store_short v20, v10, s[48:51], s57 offen
        s_mov_b64 exec, -1
        ''')
        s.stamp(11)
        s.end()

    def build(s):
        if s.P['STAMP']:
            for i in range(1,16): s.e(f's_mov_b32 s{64+2*i}, 0')
        s.stamp(0)
        s.e(f"""
        s_load_dwordx16 s[8:23], s[0:1], 0
        s_load_dwordx8 s[24:31], s[0:1], 64
        s_load_dwordx4 s[32:35], s[0:1], 96
        v_lshrrev_b32 v1, 6, v0
        s_cmp_ge_u32 s2, 256
        v_readfirstlane_b32 s3, v1
        s_cbranch_scc1 L_exit
        v_and_b32 v0, 63, v0
        s_and_b32 s4, s2, 7
        s_lshr_b32 s5, s2, 3
        s_cmp_lt_u32 s3, 4
        s_cbranch_scc1 L_kv
        s_cmp_lt_u32 s3, 7
        s_cbranch_scc1 L_w
        v_mov_b32 v14, 0
        v_mov_b32 v15, 0
        v_lshlrev_b32 v12, 3, v0
        ds_write_b64 v12, v[14:15] offset:{ZERO}
        v_lshlrev_b32 v1, 4, v0
        s_getpc_b64 s[52:53]
        L_pc:
        s_and_b32 s54, s5, 7
        s_mul_i32 s54, s54, CODE_SLICE
        s_add_u32 s54, s54, 1024-(L_pc-{NAME})
        s_add_u32 s52, s52, s54
        s_addc_u32 s53, s53, 0
        """)
        if s.P['PREF']:
            for i in range(s.P.get('SLICE',3072)//1024): s.e(f'global_load_dwordx4 v[24:27], v1, s[52:53] offset:{i*1024}')
        s.e(f"""
        v_mov_b32 v14, 1
        s_waitcnt lgkmcnt(0)
        s_barrier
        s_branch L_comm
        """)
        s.w_start()
        s.e('L_kv:')
        s.kv_start()
        s.e('L_firstkb:')
        s.kv(); s.wwave(); s.comm()
        s.e('L_end:'); s.end()
        if s.P['STAMP']:
            s.e('L_stampout:\ns_waitcnt vmcnt(0) lgkmcnt(0)\ns_memrealtime s[94:95]\ns_waitcnt lgkmcnt(0)')
            s.ws_srd()
            s.e(f's_lshl_b32 s2, s2, 3\ns_add_u32 s2, s2, s3\ns_lshl_b32 s2, s2, 6\ns_add_u32 s2, s2, {W_ST}\nv_mov_b32 v0, 0\ns_mov_b64 exec, 1')
            for q in range(4):
                for j in range(4): s.e(f'v_mov_b32 v{4+j}, s{64+2*(4*q+j)}')
                s.e(f'buffer_store_dwordx4 v[4:7], v0, s[44:47], s2 offen offset:{16*q}\ns_nop 1')
        s.e('L_exit:\ns_endpgm')
        lines,probs=fix_hazards(s.L)
        for p in probs: print('HAZARD EDGE',p,file=sys.stderr)
        return lines

def generate(P={}):
    g=G(P); lines=g.build()
    ref=open('adaLN_cond__sliding_block_cached__glu_gated_geglu__decode.s.ref').read().split('\n')
    hdr=[l for l in ref[:ref.index('.amdgcn_target "amdgcn-amd-amdhsa--gfx950"')] if '@launch' not in l]
    out='\n'.join(hdr)+f'\n; @launch grid=(256,1,1) block=(512,1,1) lds={LDSZ}\n'
    out+=f'.amdgcn_target "amdgcn-amd-amdhsa--gfx950"\n.text\n.p2align 12\n.set CODE_SLICE, {g.P.get("SLICE",3072)}\n.globl {NAME}\n.p2align 8\n.type {NAME},@function\n{NAME}:\n'
    for l in lines: out+=(l if l.endswith(':') or l.startswith('.') else '    '+l)+'\n'
    out+=f'''L_codeend:
.fill (8*CODE_SLICE+1024-(L_codeend-{NAME}))/4, 4, 0xbf810000
.section .rodata,"a"
.p2align 6
.amdhsa_kernel {NAME}
  .amdhsa_next_free_vgpr 256
  .amdhsa_next_free_sgpr 96
  .amdhsa_accum_offset 256
  .amdhsa_group_segment_fixed_size 0
  .amdhsa_kernarg_size 112
  .amdhsa_user_sgpr_count 2
  .amdhsa_user_sgpr_kernarg_segment_ptr 1
  .amdhsa_system_sgpr_workgroup_id_x 1
  .amdhsa_float_denorm_mode_32 3
.end_amdhsa_kernel
'''
    return out
if __name__=='__main__':
    P={}
    for a in sys.argv[2:]:
        k,v=a.split('='); P[k]=int(v)
    open(sys.argv[1],'w').write(generate(P))
```

```python
import sys, struct
sys.path.insert(0,'work')
from asmlib import fix_hazards
NAME='adaLN_cond__sliding_block_cached__glu_gated_geglu__decode_kernel'
def f2u(x): return struct.unpack('<I',struct.pack('<f',x))[0]
LOG2E=1.4426950408889634
ACT=0; ACTS=1168; PART=4672; PARTS=1152; OC=11584; HH=15680; TR=16448; ZERO=18496; CNT=19008; MX=19072; STAT=19104; QL=19136
EACT=19648; EACTS=400; PART0=21248; PART0B=PART0+6912; KL=36864; LDSZ=KL+65536
C_ACT,C_PART,C_PART0,C_KV,C_MX,C_OC,C_OK2,C_LATE,C_WIS,C_ST,C_Q,C_MID,C_QIS=[CNT+4*i for i in range(13)]
W_EP=0; W_XF=4096; W_MP=8192; W_QP=65536; W_M2=W_QP+196608; W_ML=W_M2+36864; W_OP=W_ML+32768; W_S4=W_OP+262144; W_X1=W_S4+73728; W_S5=W_X1+73728
W_ST=4<<20; WSZ=8<<20
BOUND=400000
T0=96
DEF=dict(DH=8,NCU=16,QHOLD=1,NA=6,SIG0=24,PT=3,DM2=4,MID=10,DLY=0,MPH=0,QLOC=1,FL1=48,NF1=10,LNG2=39,SLM=0,SLQ=2,D0=1,N0=2,D1=3,NLO=10,D2=4,NMID=16,D3=4,DQ=8,LTRIG=1,DLATE=4,FL=80,LNG=20,SIG=31,STAMP=0,PREF=1,HINT=1,COOP=1,G1NT=0,SLICE=3072,SLH=2)
HALF='0x00ff00ff00ff00ff'; E48='0xffffffffffff'

class G:
    def __init__(s,P):
        s.L=[]; s.P=dict(DEF); s.P.update(P); s.n=0
    def e(s,t):
        for l in t.split('\n'):
            l=l.strip()
            if l: s.L.append(l)
    def lab(s,p='L'):
        s.n+=1; return f'{p}_{s.n}'
    def stamp(s,i):
        if s.P['STAMP']: s.e(f's_memrealtime s[{64+2*i}:{65+2*i}]')
    def iters(s,i):
        if s.P['STAMP']: s.e(f's_sub_u32 s{64+2*i}, {BOUND}, s62\ns_mul_i32 s{64+2*i}, s{64+2*i}, 1000\ns_add_u32 s{64+2*i}, s{64+2*i}, s64')
    def end(s):
        s.e('s_branch L_stampout' if s.P['STAMP'] else 's_endpgm')
    def ws_srd(s):
        s.e(f's_mov_b32 s44, s34\ns_mov_b32 s45, s35\ns_mov_b32 s46, {WSZ}\ns_mov_b32 s47, 0x20000')
    def srd(s,d,p,n):
        s.e(f's_mov_b32 s{d}, s{p}\ns_mov_b32 s{d+1}, s{p+1}\ns_mov_b32 s{d+2}, {n}\ns_mov_b32 s{d+3}, 0x20000')
    def tag_load(s): s.e(f's_load_dword s{T0+4}, s[34:35], {W_EP}')
    def tag_setup(s):
        s.e(f's_waitcnt lgkmcnt(0)\ns_add_u32 s{T0+4}, s{T0+4}, 0x01010101')
        for j in range(4): s.e(f's_bfe_u32 s{T0+j}, s{T0+4}, {0x80000+8*j:#x}')
    def tag4(s,r,vff,rnd=False):
        if rnd:
            for j in range(4): s.e(f'v_add_u32 v{r+j}, 0x80, v{r+j}')
        for j in range(4): s.e(f'v_bfi_b32 v{r+j}, v{vff}, s{T0+j}, v{r+j}')
    def lds_spin(s,addr,val,vt,vz,sleep=0):
        l=s.lab('Lsp'); s.e(f'{l}:')
        if sleep: s.e(f's_sleep {sleep}')
        s.e(f'ds_read_b32 v{vt}, v{vz} offset:{addr}\ns_waitcnt lgkmcnt(0)\nv_cmp_gt_u32 vcc, {val}, v{vt}\ns_cbranch_vccnz {l}')
    def lds_signal(s,addr,vz,vone,restore='-1'):
        s.e(f's_mov_b64 exec, 1\nds_add_u32 v{vz}, v{vone} offset:{addr}')
        s.setexec(restore)
    def setexec(s,m):
        if m in('-1','1'): s.e(f's_mov_b64 exec, {m}')
        else:
            m=int(m,0); s.e(f's_mov_b32 exec_lo, {m&0xffffffff:#x}\ns_mov_b32 exec_hi, {m>>32:#x}')
    def poll(s,loads,regs,vt,body=None,sleep=0,lanetag=None,issued=False):
        l=s.lab('Lpo'); d=s.lab('Lpd'); n=len(loads)
        l0=s.lab('Lp0')
        if issued:
            s.e(f's_mov_b32 s62, {BOUND}\ns_branch {l0}\n{l}:')
            if sleep: s.e(f's_sleep {sleep}')
            s.e(f's_sub_u32 s62, s62, 1\ns_cbranch_scc1 {d}')
        elif sleep:
            s.e(f's_mov_b32 s62, {BOUND}\ns_branch {l0}\n{l}:\ns_sleep {sleep}\ns_sub_u32 s62, s62, 1\ns_cbranch_scc1 {d}\n{l0}:')
        else:
            s.e(f's_mov_b32 s62, {BOUND}\n{l}:\ns_sub_u32 s62, s62, 1\ns_cbranch_scc1 {d}')
        for x in loads: s.e(x)
        if issued: s.e(f'{l0}:')
        for i in range(n):
            s.e(f's_waitcnt vmcnt({n-1-i})')
            r=regs[i]
            if lanetag is not None:
                s.e(f'v_xor_b32 v{r}, v{lanetag}, v{r}')
                s.e(f'v_mov_b32 v{vt}, v{r}' if i==0 else f'v_or_b32 v{vt}, v{vt}, v{r}')
            else:
                for j in range(4): s.e(f'v_xor_b32 v{r+j}, s{T0+j}, v{r+j}')
                if i==0: s.e(f'v_or3_b32 v{vt}, v{r}, v{r+1}, v{r+2}\nv_or_b32 v{vt}, v{vt}, v{r+3}')
                else: s.e(f'v_or3_b32 v{vt}, v{vt}, v{r}, v{r+1}\nv_or3_b32 v{vt}, v{vt}, v{r+2}, v{r+3}')
            if body: body(i)
        s.e(f'v_and_b32 v{vt}, 0xff, v{vt}\nv_cmp_ne_u32 vcc, 0, v{vt}\ns_cbranch_vccnz {l}\n{d}:')
    def poll2(s,loads,regs,vt,sleep=0,onvalid=None,first=False):
        s.poll(loads,regs,vt,body=onvalid,sleep=sleep)
    def tree_sum(s,base,n,dst):
        idx=[base+4*i for i in range(n)]
        while len(idx)>2:
            nx=[]
            for k in range(0,len(idx)-1,2): s.pk('add',idx[k],idx[k],idx[k+1],4); nx.append(idx[k])
            if len(idx)&1: nx.append(idx[-1])
            idx=nx
        s.pk('add',dst,idx[0],idx[1],4)
    def hint_issue(s,base,offs,regs):
        for o,r in zip(offs,regs): s.e(f's_load_dword s{r}, s[{base}:{base+1}], {o:#x} glc')
    def hint_wait(s,base,offs,regs,sleep):
        l=s.lab('Lh'); d=s.lab('Lhd')
        s.e(f's_mov_b32 s62, {BOUND}\n{l}:\ns_waitcnt lgkmcnt(0)')
        for r in regs: s.e(f's_xor_b32 s{r}, s{r}, s{T0}')
        for r in regs[1:]: s.e(f's_or_b32 s{regs[0]}, s{regs[0]}, s{r}')
        s.e(f's_and_b32 s{regs[0]}, s{regs[0]}, 0xff\ns_cbranch_scc0 {d}\ns_sub_u32 s62, s62, 1\ns_cbranch_scc1 {d}')
        if sleep: s.e(f's_sleep {sleep}')
        s.hint_issue(base,offs,regs)
        s.e(f's_branch {l}\n{d}:')
    def unpack(s,src,lo,hi):
        if hi==src: s.e(f'v_lshlrev_b32 v{lo}, 16, v{src}\nv_and_b32 v{hi}, 0xffff0000, v{src}')
        else: s.e(f'v_and_b32 v{hi}, 0xffff0000, v{src}\nv_lshlrev_b32 v{lo}, 16, v{src}')
    def round_pairs(s,base,n,tmp):
        for k in range(n//2): s.e(f'v_cvt_pk_bf16_f32 v{tmp+k}, v{base+2*k}, v{base+2*k+1}')
        for k in range(n//2): s.unpack(tmp+k,base+2*k,base+2*k+1)
    def pk(s,op,d,a,b,n,mods=''):
        for k in range(0,n,2): s.e(f'v_pk_{op}_f32 v[{d+k}:{d+k+1}], v[{a+k}:{a+k+1}], v[{b+k}:{b+k+1}] {mods}')
    def perms(s,src,dst):
        for e_ in range(8):
            for rp in range(4):
                a=src+4*(2*rp)+(e_>>1); b=src+4*(2*rp+1)+(e_>>1)
                s.e(f'v_perm_b32 v{dst+4*e_+rp}, v{b}, v{a}, s{60+(e_&1)}')
    def stats_tail(s,t):
        s.e(f'''v_mul_f32 v{t}, {f2u(1/576):#x}, v{t}
        v_mul_f32 v{t+2}, {f2u(1/576):#x}, v{t+2}
        v_fma_f32 v{t+2}, -v{t}, v{t}, v{t+2}
        v_max_f32 v{t+2}, 0, v{t+2}
        v_cvt_pk_bf16_f32 v{t+1}, v{t}, v{t+2}
        v_and_b32 v{t+2}, 0xffff0000, v{t+1}
        v_lshlrev_b32 v{t}, 16, v{t+1}
        v_add_f32 v{t+2}, {f2u(1e-5):#x}, v{t+2}''')
    def sums(s,X,n,t):
        s.e(f'v_pk_add_f32 v[{t}:{t+1}], v[{X}:{X+1}], v[{X+2}:{X+3}]')
        s.e(f'v_pk_mul_f32 v[{t+2}:{t+3}], v[{X}:{X+1}], v[{X}:{X+1}]')
        s.e(f'v_pk_fma_f32 v[{t+2}:{t+3}], v[{X+2}:{X+3}], v[{X+2}:{X+3}], v[{t+2}:{t+3}]')
        for k in range(2,n//2):
            s.e(f'v_pk_add_f32 v[{t}:{t+1}], v[{t}:{t+1}], v[{X+2*k}:{X+2*k+1}]')
            s.e(f'v_pk_fma_f32 v[{t+2}:{t+3}], v[{X+2*k}:{X+2*k+1}], v[{X+2*k}:{X+2*k+1}], v[{t+2}:{t+3}]')
        s.e(f'v_add_f32 v{t}, v{t}, v{t+1}\nv_add_f32 v{t+2}, v{t+2}, v{t+3}')
        for r in (1,2,4,8):
            s.e(f'v_add_f32_dpp v{t}, v{t}, v{t} row_ror:{r} row_mask:0xf bank_mask:0xf')
            s.e(f'v_add_f32_dpp v{t+2}, v{t+2}, v{t+2} row_ror:{r} row_mask:0xf bank_mask:0xf')
    def layernorm(s,X,t):
        s.sums(X,12,t)
        s.e(f'''v_readlane_b32 s52, v{t}, 0
        v_readlane_b32 s53, v{t}, 16
        v_readlane_b32 s54, v{t}, 32
        v_readlane_b32 s55, v{t+2}, 0
        v_readlane_b32 s56, v{t+2}, 16
        v_readlane_b32 s57, v{t+2}, 32
        v_mov_b32 v{t}, s52
        v_add_f32 v{t}, s53, v{t}
        v_mov_b32 v{t+2}, s55
        v_add_f32 v{t}, s54, v{t}
        v_add_f32 v{t+2}, s56, v{t+2}
        v_add_f32 v{t+2}, s57, v{t+2}''')
        s.stats_tail(t)
        sub=lambda k: s.e(f'v_pk_add_f32 v[{X+2*k}:{X+2*k+1}], v[{X+2*k}:{X+2*k+1}], v[{t}:{t+1}] op_sel_hi:[1,0] neg_lo:[0,1] neg_hi:[0,1]')
        s.e(f'v_cvt_pk_bf16_f32 v{t+2}, v{t+2}, v{t+2}'); sub(0)
        s.e(f'v_lshlrev_b32 v{t+2}, 16, v{t+2}'); sub(1)
        s.e(f'v_sqrt_f32 v{t+2}, v{t+2}')
        for k in range(2,6): sub(k)
        s.e(f'v_cvt_pk_bf16_f32 v{t+2}, v{t+2}, v{t+2}\nv_lshlrev_b32 v{t+2}, 16, v{t+2}\nv_rcp_f32 v{t+2}, v{t+2}')
        s.round_pairs(X,12,t+4)
        for k in range(6): s.e(f'v_pk_mul_f32 v[{X+2*k}:{X+2*k+1}], v[{X+2*k}:{X+2*k+1}], v[{t+2}:{t+3}] op_sel_hi:[1,0]')
        s.round_pairs(X,12,t+4)
    def silu(s,X,n,t):
        for k in range(n): s.e(f'v_mul_f32 v{t+k}, {f2u(-LOG2E):#x}, v{X+k}')
        for k in range(n): s.e(f'v_min_f32 v{t+k}, {f2u(126.0):#x}, v{t+k}')
        for k in range(n): s.e(f'v_exp_f32 v{t+k}, v{t+k}')
        for k in range(n): s.e(f'v_add_f32 v{t+k}, 1.0, v{t+k}')
        for k in range(n): s.e(f'v_rcp_f32 v{t+n+k}, v{t+k}')
        for k in range(0,n,2):
            q=t+2*n
            s.e(f'v_pk_mul_f32 v[{q}:{q+1}], v[{X+k}:{X+k+1}], v[{t+n+k}:{t+n+k+1}]')
            s.e(f'v_pk_fma_f32 v[{X+k}:{X+k+1}], v[{q}:{q+1}], v[{t+k}:{t+k+1}], v[{X+k}:{X+k+1}] neg_lo:[1,0,0] neg_hi:[1,0,0]')
            s.e(f'v_pk_fma_f32 v[{X+k}:{X+k+1}], v[{X+k}:{X+k+1}], v[{t+n+k}:{t+n+k+1}], v[{q}:{q+1}]')
    def stage4(s,X,t,va,stride,off):
        s.e(f'''v_cvt_pk_bf16_f32 v{t}, v{X}, v{X+1}
        v_cvt_pk_bf16_f32 v{t+1}, v{X+2}, v{X+3}
        ds_write_b16 v{va}, v{t} offset:{off}
        ds_write_b16_d16_hi v{va}, v{t} offset:{off+stride}
        ds_write_b16 v{va}, v{t+1} offset:{off+2*stride}
        ds_write_b16_d16_hi v{va}, v{t+1} offset:{off+3*stride}''')

    def kv_start(s):
        P=s.P
        s.e(f"""
        s_lshr_b32 s6, s5, 4
        s_lshl_b32 s7, s4, 1
        s_add_u32 s6, s6, s7                ; hkv
        s_bfe_u32 s7, s5, 0x20002           ; b
        s_lshl_b32 s52, s7, 4
        s_add_u32 s52, s52, s6
        s_lshl_b32 s52, s52, 20             ; (b*16+hkv)<<20
        s_and_b32 s53, s5, 3
        s_lshl_b32 s53, s53, 2
        s_add_u32 s53, s53, s3
        s_add_u32 s53, s53, 48
        s_lshl_b32 s53, s53, 14             ; 3072*256 + (split*4+w)*16384
        s_add_u32 s52, s52, s53
        v_lshrrev_b32 v15, 4, v0            ; g
        v_and_b32 v14, 15, v0               ; i
        v_lshlrev_b32 v13, 8, v15
        v_xor_b32 v7, v14, v15
        v_xor_b32 v8, 4, v7
        v_xor_b32 v9, 8, v7
        v_xor_b32 v10, 12, v7
        v_lshl_add_u32 v1, v7, 4, v13
        v_lshl_add_u32 v2, v8, 4, v13
        v_lshl_add_u32 v3, v9, 4, v13
        v_lshl_add_u32 v4, v10, 4, v13
        s_lshl_b32 s48, s3, 14
        s_add_u32 s48, s48, {KL}
        s_mov_b32 s54, 0
        s_movk_i32 s55, 0x1000
        s_movk_i32 s56, 0x2000
        s_movk_i32 s57, 0x3000
        s_movk_i32 s38, 0x4000
        s_mov_b32 s39, 0x20000
        s_mov_b32 m0, s48
        s_waitcnt lgkmcnt(0)
        s_add_u32 s36, s10, s52
        s_addc_u32 s37, s11, 0
        """)
        if P['DLY']: s.e(f's_sleep {P["DLY"]}')
        for t in range(P['D0']): s.kload(t)
        s.tag_load()
        s.e('s_barrier')
    def thr(s,n):
        P=s.P; D=P['D0'] if n<P['N0'] else P['D1'] if n<P['NLO'] else (P['D2'] if n<P['NMID'] else P['D3'])
        if P['QHOLD'] and P['NA']<=n<P['NCU']:
            l=s.lab('Lt')
            s.e(f's_cbranch_vccnz {l}\ns_waitcnt vmcnt({D-1})\n{l}:\ns_waitcnt vmcnt({P["DH"]-1})')
        elif n>=P['NCU']:
            l=s.lab('Lt')
            s.e(f's_waitcnt lgkmcnt(0)\nv_cmp_ne_u32 vcc, s49, v48\ns_cbranch_vccnz {l}\ns_waitcnt vmcnt({D-1})\n{l}:\ns_waitcnt vmcnt({P["DH"]-1})')
        elif n>=D: s.e(f's_waitcnt vmcnt({D-1})')
    def kload(s,t):
        if t and t%4==0: s.e(f's_add_u32 m0, s48, {(t//4)*4096}')
        s.thr(t)
        s.e(f'buffer_load_dwordx4 v{1+(t&3)}, s[36:39], s{54+t//4} offen offset:{(t&3)*1024} nt lds')
    def kv(s):
        P=s.P
        s.stamp(1)
        sc=f2u(128**-0.5)
        s.e(f"""
        s_add_u32 s40, s12, s52
        s_addc_u32 s41, s13, 0
        s_movk_i32 s42, 0x4000
        s_mov_b32 s43, 0x20000
        v_lshlrev_b32 v5, 10, v15
        v_lshl_add_u32 v5, v14, 4, v5       ; V voffset g*1024+i*16
        v_lshrrev_b32 v6, 3, v14
        v_lshlrev_b32 v52, 4, v6            ; h*16 (h = i>>3)
        v_lshlrev_b32 v6, 8, v6
        v_lshl_add_u32 v6, v15, 4, v6
        v_lshlrev_b32 v13, 8, v14
        v_add_u32 v13, s48, v13
        v_lshl_add_u32 v7, v7, 4, v13
        v_lshl_add_u32 v8, v8, 4, v13
        v_lshl_add_u32 v9, v9, 4, v13
        v_lshl_add_u32 v10, v10, 4, v13
        v_and_b32 v13, 1, v0
        v_lshlrev_b32 v13, 4, v13
        v_mov_b32 v48, 0xffff
        v_lshlrev_b32 v48, v13, v48
        v_bfe_u32 v13, v0, 1, 2
        v_cmp_eq_u32 vcc, 0, v13
        v_cndmask_b32 v11, 0, v48, vcc
        v_cmp_eq_u32 vcc, 1, v13
        v_cndmask_b32 v12, 0, v48, vcc
        v_cmp_eq_u32 vcc, 3, v13
        v_cndmask_b32 v14, 0, v48, vcc
        v_cmp_eq_u32 vcc, 2, v13
        v_cndmask_b32 v13, 0, v48, vcc
        v_mov_b32 v15, 0
        v_mov_b32 v192, 1
        v_mov_b32 v193, 0xff
        s_lshl_b32 s60, s3, 2
        v_add_u32 v53, s60, v52
        v_lshrrev_b32 v54, 5, v0
        v_lshlrev_b32 v54, 4, v54           ; h2*16 (h2 = lane>>5)
        v_add_u32 v55, s60, v54
        v_lshlrev_b32 v56, 4, v0            ; 16*lane
        s_lshl_b32 s62, s3, 10
        v_add_u32 v57, s62, v56
        v_lshlrev_b32 v58, 1, v0
        s_lshl_b32 s61, s4, 5
        s_add_u32 s61, s61, s5
        s_lshl_b32 s58, s61, 7
        s_lshl_b32 s62, s3, 5
        s_add_u32 s58, s58, s62
        s_add_u32 s58, s58, {W_ML}
        s_lshl_b32 s59, s61, 10
        s_add_u32 s59, s59, {W_OP}
        s_mov_b32 s18, {sc:#x}
        s_mov_b32 s19, {sc:#x}
        s_mov_b32 s50, {f2u(LOG2E):#x}
        s_mov_b32 s51, {f2u(LOG2E):#x}
        s_cmp_lt_u32 s2, {96 if P['QHOLD'] else 0}
        s_cselect_b32 s49, -1, 0
        """)
        s.ws_srd()
        s.tag_setup()
        for n in range(P['D0'],32):
            if n<16: s.kload(n)
            else:
                k=n-16; s.thr(n)
                s.e(f'buffer_load_dwordx4 v[{64+4*k}:{67+4*k}], v5, s[40:43], s{54+k//4} offen offset:{(k&3)*256} nt')
            if P['NCU']-1<=n<31: s.e(f'ds_read_b32 v48, v15 offset:{C_Q}')
            if n==P['N0']-1 and P['QHOLD']:
                s.e('s_cmp_lt_u32 s2, 96\ns_cbranch_scc0 L_kv_nq'); s.lds_spin(C_QIS,3,48,15,sleep=1); s.e('L_kv_nq:')
            if n==P['NA']-1 and P['QHOLD']:
                s.e('s_cmp_lt_u32 s2, 96\ns_cbranch_scc0 L_kv_nq2'); s.lds_spin(C_QIS,6,48,15,sleep=1); s.e('L_kv_nq2:\ns_cselect_b64 vcc, -1, 0')
            if n==P['SIG0']: s.lds_signal(C_KV,15,192)
            if n==P['LTRIG']: s.lds_signal(C_LATE,15,192)
            if n==P['MID']: s.lds_signal(C_MID,15,192)
            if n==15: s.stamp(2)
            if n==P['SIG']: s.lds_signal(C_KV,15,192)
            if n==29:
                assert P['D3']<14 and P['DH']<14
                for T in range(4):
                    for st in range(4): s.e(f'ds_read_b128 v[{128+16*T+4*st}:{131+16*T+4*st}], v{7+st} offset:{T*4096}')
        s.stamp(10)
        s.lds_spin(C_Q,1,48,15)
        for st in range(4): s.e(f'ds_read_b128 v[{16+4*st}:{19+4*st}], v6 offset:{QL+64*st}')
        s.e('v_readfirstlane_b32 s53, v48')
        s.stamp(3)
        s.e('s_waitcnt lgkmcnt(0)')
        for T in range(4):
            for st in range(4):
                c='0' if st==0 else f'v[{32+4*T}:{35+4*T}]'
                s.e(f'v_mfma_f32_16x16x32_bf16 v[{32+4*T}:{35+4*T}], v[{128+16*T+4*st}:{131+16*T+4*st}], v[{16+4*st}:{19+4*st}], {c}')
        s.round_pairs(32,16,16)
        for k in range(8): s.e(f'v_pk_mul_f32 v[{32+2*k}:{33+2*k}], v[{32+2*k}:{33+2*k}], s[18:19]')
        s.round_pairs(32,16,16)
        s.e('v_max3_f32 v48, v32, v33, v34')
        for k in range(35,47,2): s.e(f'v_max3_f32 v48, v48, v{k}, v{k+1}')
        s.e(f'''v_max_f32 v48, v48, v47
        v_mov_b32 v49, v48
        v_permlane16_swap_b32 v48, v49
        v_max_f32 v48, v48, v49
        v_mov_b32 v49, v48
        v_permlane32_swap_b32 v48, v49
        v_max_f32 v48, v48, v49              ; m (head i>>3)
        s_mov_b32 exec_lo, 0x101
        s_mov_b32 exec_hi, 0
        ds_write_b32 v53, v48 offset:{MX}''')
        s.lds_signal(C_MX,15,192)
        s.e(f'v_mul_f32 v50, {f2u(-LOG2E):#x}, v48')
        for k in range(8): s.e(f'v_pk_fma_f32 v[{32+2*k}:{33+2*k}], v[{32+2*k}:{33+2*k}], s[50:51], v[50:51] op_sel_hi:[1,1,0]')
        for k in range(16): s.e(f'v_exp_f32 v{32+k}, v{32+k}')
        s.e('v_pk_add_f32 v[50:51], v[32:33], v[34:35]')
        for k in range(2,8): s.e(f'v_pk_add_f32 v[50:51], v[50:51], v[{32+2*k}:{33+2*k}]')
        s.e('''v_add_f32 v50, v50, v51
        v_mov_b32 v51, v50
        v_permlane16_swap_b32 v50, v51
        v_add_f32 v50, v50, v51
        v_mov_b32 v51, v50
        v_permlane32_swap_b32 v50, v51
        v_add_f32 v50, v50, v51              ; l (head i>>3)''')
        s.stamp(4)
        s.lds_spin(C_MX,4,49,15)
        s.e(f'''
        ds_read_b128 v[16:19], v52 offset:{MX}
        ds_read_b128 v[20:23], v54 offset:{MX}
        ds_read_b32 v60, v55 offset:{MX}
        ''')
        def pbuild(k):
            s.e(f'v_cvt_pk_bf16_f32 v{32+k}, v{32+k}, v{32+k}')
            for dw in range(4): s.e(f'v_and_b32 v{128+4*k+dw}, v{32+k}, v{11+dw}')
        pbuild(0); pbuild(1)
        s.e(f'''
        s_waitcnt lgkmcnt(0)
        v_max3_f32 v16, v16, v17, v18
        v_max3_f32 v20, v20, v21, v22
        v_max_f32 v16, v16, v19
        v_max_f32 v20, v20, v23
        v_sub_f32 v48, v48, v16
        v_sub_f32 v60, v60, v20
        v_mul_f32 v48, s50, v48
        v_mul_f32 v60, s50, v60
        v_exp_f32 v48, v48
        v_exp_f32 v60, v60
        v_mul_f32 v17, v48, v50
        ''')
        s.tag4(16,193)
        s.e(f'''
        s_mov_b32 exec_lo, 0x101
        s_mov_b32 exec_hi, 0
        s_cmp_eq_u32 s53, 2
        s_cbranch_scc1 L_ml_loc
        buffer_store_dwordx4 v[16:19], v58, s[44:47], s58 offen sc1
        s_branch L_ml_done
        L_ml_loc:
        buffer_store_dwordx4 v[16:19], v58, s[44:47], s58 offen
        L_ml_done:
        s_mov_b64 exec, -1
        ''')
        def pv(k):
            s.e(f's_waitcnt vmcnt({16-k})')
            c='0' if k==0 else 'v[24:27]'
            s.e(f'v_mfma_f32_16x16x32_bf16 v[24:27], v[{128+4*k}:{131+4*k}], v[{64+4*k}:{67+4*k}], {c}')
        for k in range(2,16):
            pbuild(k)
            if k<12: pv(k-2)
        for k in range(10,16): pv(k)
        s.stamp(5)
        s.e(f'''
        v_pk_mul_f32 v[24:25], v[24:25], v[60:61] op_sel_hi:[1,0]
        v_pk_mul_f32 v[26:27], v[26:27], v[60:61] op_sel_hi:[1,0]
        ds_write_b128 v57, v[24:27] offset:{OC}
        s_mov_b64 exec, 1
        ds_add_rtn_u32 v48, v15, v192 offset:{C_OC}
        s_waitcnt lgkmcnt(0)
        v_cmp_eq_u32 vcc, 3, v48
        s_mov_b64 exec, -1
        s_cbranch_vccz L_kv_tail
        ds_read_b128 v[32:35], v56 offset:{OC}
        ds_read_b128 v[36:39], v56 offset:{OC+1024}
        ds_read_b128 v[44:47], v56 offset:{OC+2048}
        ds_read_b128 v[48:51], v56 offset:{OC+3072}
        s_waitcnt lgkmcnt(2)
        v_pk_add_f32 v[32:33], v[32:33], v[36:37]
        v_pk_add_f32 v[34:35], v[34:35], v[38:39]
        s_waitcnt lgkmcnt(0)
        v_pk_add_f32 v[44:45], v[44:45], v[48:49]
        v_pk_add_f32 v[46:47], v[46:47], v[50:51]
        v_pk_add_f32 v[32:33], v[32:33], v[44:45]
        v_pk_add_f32 v[34:35], v[34:35], v[46:47]
        ''')
        s.tag4(32,193)
        s.e(f'''
        s_cbranch_scc1 L_op_loc
        buffer_store_dwordx4 v[32:35], v56, s[44:47], s59 offen sc1
        s_branch L_op_done
        L_op_loc:
        buffer_store_dwordx4 v[32:35], v56, s[44:47], s59 offen
        L_op_done:
        ''')
        s.lds_signal(C_OC,15,192)
        s.e('L_kv_tail:')
        s.stamp(6)
        s.e('s_cmp_lt_u32 s5, 18\ns_cbranch_scc1 L_kv_ffn\ns_cmp_lt_u32 s5, 27\ns_cbranch_scc0 L_end')
        s.e(f'''
        v_bfe_u32 v49, v0, 2, 2              ; sigma
        v_add_u32 v48, v54, v49
        v_lshlrev_b32 v48, 7, v48
        v_and_b32 v49, 3, v0
        v_lshl_add_u32 v48, v49, 5, v48
        v_bfe_u32 v49, v0, 4, 1
        v_lshl_add_u32 v48, v49, 4, v48
        s_lshl_b32 s60, s4, 5
        s_lshl_b32 s61, s3, 2
        s_add_u32 s60, s60, s61              ; x*32 + b*4
        s_lshl_b32 s61, s60, 7
        s_add_u32 s61, s61, {W_ML}
        s_lshl_b32 s60, s60, 10
        s_add_u32 s58, s60, {W_OP}
        s_add_u32 s59, s58, {16*1024}
        v_and_b32 v55, 15, v0
        v_lshlrev_b32 v55, 4, v55            ; 8j*2
        v_lshl_add_u32 v55, v49, 3, v55
        v_lshl_add_u32 v55, v54, 4, v55      ; + h*256
        s_mul_i32 s60, s3, {ACTS}
        v_add_u32 v55, s60, v55
        v_lshlrev_b32 v54, 2, v54            ; h*64
        ''')
        s.lds_spin(C_WIS,3,49,15)
        s.stamp(7)
        loads=['buffer_load_dwordx4 v[40:43], v48, s[44:47], s61 offen sc1']
        loads+=[f'buffer_load_dwordx4 v[{64+4*i}:{67+4*i}], v56, s[44:47], s{58+i//4} offen offset:{(i&3)*1024} sc1' for i in range(8)]
        def onv(i):
            if i==0:
                s.e('v_mov_b32 v52, v40')
                for r in (1,2,4,8): s.e(f'v_max_f32_dpp v52, v52, v52 row_ror:{r} row_mask:0xf bank_mask:0xf')
                s.e('v_sub_f32 v52, v40, v52\nv_mul_f32 v52, s50, v52\nv_exp_f32 v52, v52\nv_mul_f32 v53, v52, v41')
                for r in (1,2,4,8): s.e(f'v_add_f32_dpp v53, v53, v53 row_ror:{r} row_mask:0xf bank_mask:0xf')
                s.e('v_rcp_f32 v53, v53\nv_mul_f32 v52, v52, v53')
                for hk in range(2):
                    for sg in range(4): s.e(f'ds_bpermute_b32 v{16+2*(4*hk+sg)}, v54, v52 offset:{(hk*32+sg*4)*4}')
        s.vff=193
        s.poll2(loads,[40]+[64+4*i for i in range(8)],49,onvalid=onv)
        s.iters(12)
        s.e('s_waitcnt lgkmcnt(0)')
        for i in range(8):
            a=32+4*(i//4); w=16+2*i; d=64+4*i
            for h in (0,2):
                if i&3==0: s.e(f'v_pk_mul_f32 v[{a+h}:{a+h+1}], v[{d+h}:{d+h+1}], v[{w}:{w+1}] op_sel_hi:[1,0]')
                else: s.e(f'v_pk_fma_f32 v[{a+h}:{a+h+1}], v[{d+h}:{d+h+1}], v[{w}:{w+1}], v[{a+h}:{a+h+1}] op_sel_hi:[1,0,1]')
        s.e(f'''
        v_cvt_pk_bf16_f32 v32, v32, v33
        v_cvt_pk_bf16_f32 v33, v34, v35
        v_cvt_pk_bf16_f32 v36, v36, v37
        v_cvt_pk_bf16_f32 v37, v38, v39
        ds_write_b64 v55, v[32:33] offset:{ACT}
        ds_write_b64 v55, v[36:37] offset:{ACT+512}
        ''')
        s.lds_signal(C_ACT,15,192)
        s.stamp(8)
        s.end()
        s.e(f'''
        L_kv_ffn:
        v_lshlrev_b32 v13, 3, v0
        s_mul_i32 s60, s3, {ACTS}
        v_add_u32 v13, s60, v13
        s_and_b32 s60, s5, {1 if P['COOP'] else 0}
        s_lshl_b32 s60, s60, 3
        v_xor_b32 v13, s60, v13
        s_mul_i32 s61, s3, 2304
        s_add_u32 s58, s61, {W_M2+9216}      ; sb
        s_add_u32 s59, s61, {W_M2+2*9216}    ; cb
        s_mul_i32 s60, s4, 9216
        s_add_u32 s60, s60, s61
        s_add_u32 s60, s60, {W_X1}
        ''')
        s.setexec(E48)
        loads=[f'buffer_load_dwordx4 v[{40+4*k}:{43+4*k}], v56, s[44:47], s58 offen offset:{768*k} sc1' for k in range(3)]
        loads+=[f'buffer_load_dwordx4 v[{28+4*k}:{31+4*k}], v56, s[44:47], s59 offen offset:{768*k} sc1' for k in range(3)]
        s.lds_spin(C_WIS,3,64,15,sleep=1)
        s.stamp(11)
        s.poll2(loads,[40,44,48,28,32,36],64,sleep=8)
        for k in range(6): s.e(f'v_pk_add_f32 v[{28+2*k}:{29+2*k}], v[{28+2*k}:{29+2*k}], 1.0 op_sel_hi:[1,0]')
        s.round_pairs(28,12,64)
        s.lds_spin(C_WIS,6,64,15,sleep=1)
        s.stamp(7)
        s.poll2([f'buffer_load_dwordx4 v[{16+4*k}:{19+4*k}], v56, s[44:47], s60 offen offset:{768*k} sc1' for k in range(3)],[16,20,24],64)
        s.stamp(8)
        s.layernorm(16,64)
        s.pk('mul',16,16,28,12); s.round_pairs(16,12,64); s.pk('add',16,16,40,12)
        for k in range(6):
            s.e(f'v_cvt_pk_bf16_f32 v{64+k}, v{16+2*k}, v{17+2*k}')
            if k&1: s.e(f'ds_write_b64 v13, v[{63+k}:{64+k}] offset:{(k>>1)*384}')
        s.lds_signal(C_ACT,15,192)
        s.stamp(9)
        s.end()

    def col_voff(s):
        s.e(f"""
        v_and_b32 v5, 8, v0
        v_lshrrev_b32 v6, 4, v0
        v_lshlrev_b32 v6, 1, v6
        v_add_u32 v5, v5, v6
        v_mul_u32_u24 v1, s56, v5
        v_and_b32 v5, 7, v0
        v_lshlrev_b32 v5, 2, v5
        v_add_lshl_u32 v1, v1, v5, 2
        """)
    def a_addrs(s,base,rows,wmul):
        s.e(f"""
        v_and_b32 v5, 3, v0
        v_mul_u32_u24 v5, {rows}, v5
        v_and_b32 v6, 4, v0
        v_lshl_add_u32 v5, v6, 4, v5
        v_and_b32 v6, 48, v0
        s_mul_i32 s54, s7, {wmul}
        s_add_u32 s54, s54, {base}
        v_add3_u32 v5, v5, v6, s54
        v_mov_b32 v6, {ZERO}
        v_and_b32 v7, 8, v0
        v_cmp_eq_u32 vcc, 0, v7
        v_cndmask_b32 v2, v6, v5, vcc
        v_cndmask_b32 v3, v5, v6, vcc
        """)
    def part_waddr(s):
        s.e(f"""
        v_bfe_u32 v5, v0, 3, 1
        v_mul_u32_u24 v5, {PARTS}, v5
        v_lshrrev_b32 v6, 5, v0
        v_mul_u32_u24 v6, 144, v6
        v_add_u32 v5, v5, v6
        v_and_b32 v6, 7, v0
        v_lshl_add_u32 v5, v6, 4, v5
        s_mul_i32 s54, s7, {2*PARTS}
        v_add_u32 v4, s54, v5
        s_mov_b32 s60, 0x05040100
        s_mov_b32 s61, 0x07060302
        """)
    def col_mfma(s,GB,part,cpart,third=None):
        ns=len(GB)
        for st in range(ns):
            if st==2 and third: s.e(f'ds_read_b128 v[{16+8*st}:{19+8*st}], v{third[0]}\nds_read_b128 v[{20+8*st}:{23+8*st}], v{third[1]}')
            else: s.e(f'ds_read_b128 v[{16+8*st}:{19+8*st}], v2 offset:{128*st}\nds_read_b128 v[{20+8*st}:{23+8*st}], v3 offset:{128*st}')
        for st in range(ns):
            for gm in range(2):
                s.e(f's_waitcnt lgkmcnt({2*ns-1-2*st-gm})')
                for a in range(4):
                    c='0' if (st==0 and gm==0) else f'v[{40+4*a}:{43+4*a}]'
                    b=GB[st]+4*(2*a+gm)
                    s.e(f'v_mfma_f32_16x16x32_bf16 v[{40+4*a}:{43+4*a}], v[{16+8*st+4*gm}:{19+8*st+4*gm}], v[{b}:{b+3}], {c}')
        s.setexec('0xff0000ffff0000ff')
        for a in range(4): s.e(f'ds_write_b128 v4, v[{40+4*a}:{43+4*a}] offset:{part+a*288}')
        s.lds_signal(cpart,15,14)
    def part_sum(s,vaddr,r,part):
        for i in range(6): s.e(f'ds_read_b128 v[{r+4*i}:{r+4*i+3}], v{vaddr} offset:{part+i*PARTS}')
        for i in range(1,6):
            s.e(f's_waitcnt lgkmcnt({5-i})')
            s.pk('add',r,r,r+4*i,4)
    def part_addr(s,v,t):
        s.e(f'v_and_b32 v{v}, 7, v0\nv_mul_u32_u24 v{v}, 144, v{v}\nv_lshrrev_b32 v{t}, 3, v0\nv_lshl_add_u32 v{v}, v{t}, 4, v{v}')
    def early_ids(s):
        s.e(f"""
        s_mul_i32 s58, s101, 3641
        s_mov_b32 s6, s101
        s_lshr_b32 s58, s58, 16              ; M1: idx/18
        s_mul_i32 s53, s58, 18
        s_sub_u32 s6, s6, s53
        s_lshl_b32 s53, s4, 2
        s_and_b32 s54, s5, 3
        s_add_u32 s53, s53, s54
        s_lshl_b32 s53, s53, 1
        s_lshr_b32 s54, s5, 2
        s_cmp_lt_u32 s2, 96
        s_cselect_b32 s53, s53, s6
        s_cselect_b32 s58, s54, s58
        """)
    def w_start(s):
        s.e(f"""
        L_w:
        s_sub_u32 s7, s3, 4
        v_mov_b32 v15, 0
        v_mov_b32 v14, 1
        s_cmp_lt_u32 s101, 54
        s_cbranch_scc0 L_w_ne
        """)
        s.early_ids()
        s.e('s_movk_i32 s56, 6912\ns_cmovk_i32 s56, 8192')
        s.col_voff()
        s.e(f"""
        s_mul_i32 s58, s58, 3
        s_add_u32 s58, s58, s7
        s_lshl_b32 s58, s58, 6               ; k0 = 192*ks + 64*w
        s_mul_i32 s52, s58, s56
        s_lshl_b32 s53, s53, 7
        s_add_u32 s52, s52, s53
        s_mul_i32 s38, s56, 576
        s_mov_b32 s39, 0x20000
        s_movk_i32 s50, 4608
        s_mov_b32 s51, 0x20000
        s_lshl_b32 s57, s58, 1
        v_lshlrev_b32 v12, 1, v0
        s_cmp_lt_u32 s2, 96
        s_waitcnt lgkmcnt(0)
        s_cselect_b64 s[36:37], s[14:15], s[28:29]
        s_cselect_b64 s[48:49], s[8:9], s[26:27]
        """)
        for b in range(4): s.e(f'buffer_load_ushort v{56+b}, v12, s[48:51], s57 offen offset:{1152*b}')
        DQ=s.P['DQ']
        s.e('s_cbranch_scc1 L_w_q0')
        for n in range(8):
            s.e(f'buffer_load_dwordx4 v[{96+4*n}:{99+4*n}], v1, s[36:39], s52 offen nt')
            if n<7: s.e('s_add_u32 s52, s52, s56')
        s.tag_load()
        s.e('s_barrier\ns_branch L_w_early\nL_w_q0:')
        for n in range(DQ): s.qload(n)
        s.tag_load()
        s.e('s_barrier\ns_branch L_w_q1\nL_w_ne:\ns_waitcnt lgkmcnt(0)')
        s.tag_load()
        s.e('s_barrier\ns_branch L_w_l0')
    def qload(s,n):
        r=96+32*(n&1)+4*(n>>1)
        s.e(f'buffer_load_dwordx4 v[{r}:{r+3}], v1, s[36:39], s52 offen offset:{128*(n&1)} nt')
        if n&1 and n<15: s.e('s_add_u32 s52, s52, s56')
    def wwave(s):
        P=s.P
        s.e('L_w_q1:')
        for n in range(P['DQ'],16):
            s.e(f's_waitcnt vmcnt({P["DQ"]-1})'); s.qload(n)
        s.lds_signal(C_QIS,15,14)
        s.e('L_w_early:\nv_mov_b32 v11, 0xff')
        s.stamp(1)
        s.a_addrs(EACT,EACTS,128)
        s.part_waddr()
        s.ws_srd()
        s.e(f's_lshl_b32 s54, s7, 7\nv_add_u32 v12, s54, v12\nv_lshlrev_b32 v13, 4, v0\ns_lshl_b32 s58, s58, 4\ns_add_u32 s58, s58, {W_MP}')
        s.tag_setup()
        s.stamp(12)
        s.e('s_waitcnt vmcnt(8)')
        s.stamp(13)
        for b in range(4): s.e(f'v_lshlrev_b32 v{56+b}, 16, v{56+b}')
        s.e('s_cmp_lt_u32 s2, 96\ns_cbranch_scc1 L_w_q')
        s.silu(56,4,16)
        s.stage4(56,60,12,EACTS,EACT)
        s.stamp(14)
        s.e('s_waitcnt vmcnt(0)')
        s.perms(96,64)
        s.stamp(2)
        s.e('s_branch L_w_emm\nL_w_q:')
        s.lds_spin(C_ST,1,5,15,sleep=1)
        s.e(f'ds_read_b128 v[16:19], v15 offset:{STAT}\nds_read_b128 v[20:23], v15 offset:{STAT+16}\ns_waitcnt lgkmcnt(0)')
        s.pk('add',56,56,16,4,'neg_lo:[0,1] neg_hi:[0,1]'); s.round_pairs(56,4,60)
        s.pk('mul',56,56,20,4); s.round_pairs(56,4,60)
        s.e('s_lshl_b32 s52, s4, 7\ns_add_u32 s52, s52, s58\ns_add_u32 s40, s34, s52\ns_addc_u32 s41, s35, 0')
        hr=[10,11,12,13,18,19]; ho=[9216*i for i in range(6)]
        for i in range(1,6): s.e(f's_add_u32 s{52+i}, s58, {9216*i}')
        so=[58,54,56,53,55,57]
        loads=[f'buffer_load_dwordx4 v[{16+4*i}:{19+4*i}], v13, s[44:47], s{so[i]} offen sc1' for i in range(6)]
        if P['MPH']:
            s.hint_issue(40,ho,hr); s.hint_wait(40,ho,hr,P['SLH'])
            s.stamp(11)
            for x in loads: s.e(x)
        s.e(f's_waitcnt vmcnt({6 if P["MPH"] else 0})')
        s.perms(96,64); s.perms(128,96)
        s.stamp(2)
        s.poll(loads,[16+4*i for i in range(6)],5,sleep=P['SLM'],issued=P['MPH'])
        s.lds_signal(C_QIS,15,14)
        s.tree_sum(28,3,28); s.tree_sum(16,3,16)
        s.stamp(3)
        s.e('v_cvt_pk_bf16_f32 v60, v28, v29\nv_cvt_pk_bf16_f32 v61, v30, v31\nv_cvt_pk_bf16_f32 v62, v16, v17\nv_cvt_pk_bf16_f32 v63, v18, v19')
        s.unpack(60,28,29); s.unpack(61,30,31)
        s.e('v_pk_add_f32 v[28:29], v[28:29], 1.0 op_sel_hi:[1,0]\nv_pk_add_f32 v[30:31], v[30:31], 1.0 op_sel_hi:[1,0]')
        s.unpack(62,16,17); s.unpack(63,18,19)
        s.round_pairs(28,4,60)
        s.pk('mul',56,56,28,4); s.round_pairs(56,4,60); s.pk('add',56,56,16,4)
        s.stage4(56,60,12,EACTS,EACT)
        s.e('ds_read_b128 v[16:19], v2\nds_read_b128 v[20:23], v3')
        for gm in range(2):
            s.e(f's_waitcnt lgkmcnt({1-gm})')
            for u in range(2):
                for a in range(4):
                    acc=24+16*u+4*a; b=64+32*u+4*(2*a+gm); c='0' if gm==0 else f'v[{acc}:{acc+3}]'
                    s.e(f'v_mfma_f32_16x16x32_bf16 v[{acc}:{acc+3}], v[{16+4*gm}:{19+4*gm}], v[{b}:{b+3}], {c}')
        s.setexec('0xff0000ffff0000ff')
        for u in range(2):
            for a in range(4): s.e(f'ds_write_b128 v4, v[{24+16*u+4*a}:{27+16*u+4*a}] offset:{(PART0,PART0B)[u]+a*288}')
        s.lds_signal(C_PART0,15,14)
        s.stamp(4)
        s.e('s_branch L_w_late\nL_w_emm:')
        s.col_mfma([64],PART0,C_PART0)
        s.stamp(4)
        s.e('s_branch L_w_late\nL_w_l0:')
        s.part_waddr()
        s.e("""
        L_w_late:
        s_cmp_ge_u32 s2, 252
        s_cbranch_scc1 L_end
        """)
        s.a_addrs(ACT,ACTS,384)
        s.e("""
        s_cmp_lt_u32 s2, 144
        s_cbranch_scc1 L_w_ffn
        s_sub_u32 s53, s5, 18
        s_mul_i32 s54, s4, 4608
        s_add_u32 s53, s53, s54
        s_sub_u32 s6, s2, 198                ; M2 unit
        s_cmp_lt_u32 s2, 216
        s_cselect_b32 s53, s53, s6
        s_movk_i32 s56, 6912
        s_cmovk_i32 s56, 1152
        s_movk_i32 s38, 576
        s_cmovk_i32 s38, 4096
        s_cselect_b64 s[36:37], s[16:17], s[28:29]
        s_cselect_b32 s59, s7, 0
        s_lshl_b32 s53, s53, 7
        s_mul_i32 s38, s56, s38
        s_mov_b32 s39, 0x20000
        s_mul_i32 s52, s7, 192
        s_mul_i32 s52, s52, s56
        s_add_u32 s52, s52, s53
        s_mul_i32 s57, s56, 57
        s_cmp_eq_u32 s59, 2
        s_cselect_b32 s54, 0, 256
        v_add_u32 v8, s54, v2
        v_add_u32 v9, s54, v3
        """)
        s.col_voff()
        s.srd(48,26,4608)
        s.e('s_mul_i32 s54, s7, 384\nv_lshlrev_b32 v12, 1, v0\nv_add_u32 v12, s54, v12')
        if P['LTRIG']>=P['D0']: s.lds_spin(C_LATE,4,5,15,sleep=2)
        s.e('s_cmp_lt_u32 s2, 216\ns_cselect_b64 vcc, 0, -1')
        s.stamp(5)
        s.e('s_cbranch_vccz L_w_l1')
        for st in range(3):
            for b in range(4): s.e(f'buffer_load_ushort v{16+4*st+b}, v12, s[48:51], 0 offen offset:{1152*b+128*st}')
        s.e('L_w_l1:')
        for n in range(24):
            if n==16: s.e('s_cmp_eq_u32 s59, 2\ns_cselect_b32 s52, 0x40000000, s52')
            if n>=P['DLATE'] and P['DLATE']<P['DM2']:
                l=s.lab('Ll'); s.e(f's_cbranch_vccnz {l}\ns_waitcnt vmcnt({P["DLATE"]-1})\n{l}:')
            if n>=P['DM2']: s.e(f's_waitcnt vmcnt({P["DM2"]-1})')
            s.e(f'buffer_load_dwordx4 v[{96+4*n}:{99+4*n}], v1, s[36:39], s52 offen nt')
            if n<23: s.e(f's_add_u32 s52, s52, s{57 if n%8==7 else 56}')
        s.e('s_cbranch_vccz L_w_l3')
        for r in range(16,28): s.e(f'v_lshlrev_b32 v{r}, 16, v{r}')
        s.silu(16,12,28)
        for st in range(3): s.stage4(16+4*st,28+2*st,12,ACTS,ACT+128*st)
        s.e('L_w_l3:')
        s.lds_signal(C_WIS,15,14)
        s.stamp(6)
        for gq in range(3):
            s.e(f's_waitcnt vmcnt({16-8*gq})'); s.perms(96+32*gq,64+32*gq)
        s.stamp(8)
        s.e('s_cmp_lt_u32 s2, 216\ns_cbranch_scc0 L_w_l2')
        s.lds_spin(C_ACT,4,5,15)
        s.e('L_w_l2:')
        s.col_mfma([64,96,128],PART,C_PART,third=(8,9))
        s.stamp(9)
        s.end()
        s.e('L_w_ffn:\ns_cmp_lt_u32 s101, 54\ns_cbranch_scc1 L_w_ff1')
        s.tag_setup()
        s.e('L_w_ff1:')
        s.ws_srd()
        s.srd(40,24,4608*1152)
        s.e(f'''
        s_mul_i32 s6, s4, 18
        s_add_u32 s6, s6, s5                 ; f
        v_and_b32 v5, 8, v0
        v_lshrrev_b32 v6, 4, v0
        v_lshl_add_u32 v5, v6, 1, v5
        v_mul_u32_u24 v5, {4*9216}, v5       ; (32*kappa+8g)*9216
        v_and_b32 v7, 3, v0
        v_lshl_add_u32 v5, v7, 4, v5
        s_mul_i32 s52, s7, {192*9216}
        s_lshl_b32 s53, s6, 6
        s_add_u32 s52, s52, s53
        v_add_u32 v5, s52, v5
        v_and_b32 v7, 4, v0
        v_cmp_eq_u32 vcc, 0, v7
        v_mov_b32 v61, s22
        v_mov_b32 v62, s20
        v_cndmask_b32 v10, v61, v62, vcc
        v_mov_b32 v61, s23
        v_mov_b32 v62, s21
        v_cndmask_b32 v11, v61, v62, vcc
        v_add_co_u32 v10, vcc, v10, v5
        v_addc_co_u32 v11, vcc, 0, v11, vcc
        s_movk_i32 s54, 9216
        s_mov_b32 s55, 0
        s_mov_b32 s57, 0
        s_and_b32 s56, s5, {1 if P['COOP'] else 0}
        s_xor_b32 s56, s56, 1
        s_mul_i32 s56, s56, {4*9216}
        v_lshl_add_u64 v[62:63], v[10:11], 0, s[56:57]
        s_xor_b32 s56, s56, {4*9216}
        v_lshl_add_u64 v[10:11], v[10:11], 0, s[56:57]
        s_mov_b32 s56, {61*9216}
        v_mul_u32_u24 v1, {8*1152}, v6
        v_and_b32 v7, 15, v0
        v_lshl_add_u32 v1, v7, 4, v1
        s_mul_i32 s52, s6, {32*1152}
        s_mul_i32 s53, s7, 384
        s_add_u32 s52, s52, s53
        s_add_u32 s53, s52, 4608
        v_and_b32 v5, 8, v0
        v_add_u32 v5, v5, v6
        v_mul_u32_u24 v12, 18432, v5
        v_and_b32 v5, 7, v0
        v_lshl_add_u32 v12, v5, 4, v12       ; S5 voffset
        s_mul_i32 s48, s7, {24*18432}
        s_lshl_b32 s49, s6, 7
        s_add_u32 s48, s48, s49
        s_add_u32 s48, s48, {W_S5}
        s_add_u32 s49, s48, {4*18432}
        s_add_u32 s50, s48, {16*18432}
        s_add_u32 s51, s48, {20*18432}
        ''')
        s.part_addr(13,5)
        s.e(f'''
        s_lshl_b32 s58, s7, 8
        s_add_u32 s58, s58, {HH}
        v_lshrrev_b32 v5, 5, v0
        v_lshlrev_b32 v5, 7, v5
        v_and_b32 v7, 31, v0
        v_lshl_add_u32 v5, v7, 1, v5
        v_add_u32 v60, s58, v5
        v_and_b32 v5, 3, v0
        v_lshlrev_b32 v5, 6, v5
        v_lshl_add_u32 v5, v6, 4, v5
        v_add_u32 v5, s58, v5
        v_bfe_u32 v7, v0, 2, 2
        v_mov_b32 v61, {ZERO}
        v_mov_b32 v8, 0xff
        ''')
        for gm in range(4): s.e(f'v_cmp_eq_u32 vcc, {gm}, v7\nv_cndmask_b32 v{56+gm}, v61, v5, vcc')
        s.e('s_lshl_b32 s58, s6, 6\ns_add_u32 s58, s58, s20\ns_bfe_u32 s58, s58, 0x30007\ns_cmp_eq_u32 s58, 3\ns_cselect_b32 s58, 4, 8')
        s.lds_spin(C_KV,'s58',5,15,sleep=2)
        s.stamp(5)
        g1=[('g',8*st+r) for st in range(3) for r in range(4)]; g2=[('g',8*st+r) for st in range(3) for r in range(4,8)]
        dn=[('d',n) for n in range(16)]
        ops=[]
        for k in range(12):
            ops.append(g1[k])
            if k>=2:
                c=2 if (k%2==0 or k==11) else 1
                ops+=dn[:c]; dn=dn[c:]
        ops+=dn+g2
        lines=lambda o: 16 if o[0]=='g' else (8 if o[1]<8 else 4)
        half=False; prevrow=0
        for k,o in enumerate(ops):
            if k==P['NF1']:
                assert not half
                s.lds_spin(C_OC,5,5,15,sleep=1)
            tot=lines(o); keep=0
            for p in reversed(ops[:k]):
                if tot+lines(p)>(P['FL1'] if k<P['NF1'] else P['FL']): break
                tot+=lines(p); keep+=1
            if keep<k: s.e(f's_waitcnt vmcnt({keep})')
            wanth=(o[0]=='d' and o[1]>=8)
            if wanth!=half: s.setexec(HALF if wanth else '-1'); half=wanth
            if o[0]=='g':
                n=o[1]; row=64*(n//8)+(n&3)
                if n==4: s.e('v_mov_b32 v10, v62\nv_mov_b32 v11, v63'); prevrow=0
                d=row-prevrow; prevrow=row
                if d: s.e(f'v_lshl_add_u64 v[10:11], v[10:11], 0, s[{54 if d==1 else 56}:{55 if d==1 else 57}]')
                s.e(f'global_load_dwordx4 v[{96+4*n}:{99+4*n}], v[10:11], off {"nt" if (n&4 or P["G1NT"]) else ""}')
            else:
                n=o[1]; rho=n&7
                s.e(f'buffer_load_dwordx4 v[{192+4*n}:{195+4*n}], v1, s[40:43], s{52+rho//4} offen offset:{(rho&3)*1152+(256 if n>=8 else 0)} nt')
            if k==P['LNG'] or k==P['LNG2']: s.lds_signal(C_WIS,15,14,restore=HALF if half else '-1')
        s.stamp(6)
        last=lambda pred: len(ops)-1-max(k for k,o in enumerate(ops) if pred(o))
        s.e(f's_waitcnt vmcnt({last(lambda o:o[0]=="d")})'); s.perms(192,64); s.perms(224,192)
        s.stamp(7)
        for gq,dst in ((0,224),(1,96),(2,128)):
            s.e(f's_waitcnt vmcnt({last(lambda o:o[0]=="g" and o[1]//8==gq)})'); s.perms(96+32*gq,dst)
        DB=[64,192]
        s.stamp(8)
        s.lds_spin(C_ACT,4,5,15)
        s.col_mfma([224,96,128],PART,C_PART)
        s.stamp(9)
        s.lds_spin(C_PART,3,5,15)
        s.part_sum(13,16,PART)
        c0=-2*0.7978845608028654*LOG2E; c1=c0*0.044715
        s.round_pairs(16,4,20)
        s.e(f'''
        v_mov_b32 v22, {f2u(c0):#x}
        v_permlane32_swap_b32 v16, v18
        v_permlane32_swap_b32 v17, v19
        v_mul_f32 v20, v16, v16
        v_mul_f32 v21, v17, v17
        v_fmamk_f32 v20, v20, {f2u(c1):#x}, v22
        v_fmamk_f32 v21, v21, {f2u(c1):#x}, v22
        v_mul_f32 v20, v20, v16
        v_mul_f32 v21, v21, v17
        v_exp_f32 v20, v20
        v_exp_f32 v21, v21
        v_add_f32 v20, 1.0, v20
        v_add_f32 v21, 1.0, v21
        v_rcp_f32 v20, v20
        v_rcp_f32 v21, v21
        v_pk_mul_f32 v[16:17], v[16:17], v[20:21]
        v_cvt_pk_bf16_f32 v20, v16, v17
        v_lshlrev_b32 v16, 16, v20
        v_and_b32 v17, 0xffff0000, v20
        v_pk_mul_f32 v[16:17], v[16:17], v[18:19]
        v_cvt_pk_bf16_f32 v20, v16, v17
        ds_write_b16 v60, v20
        ds_write_b16_d16_hi v60, v20 offset:64
        ''')
        for gm in range(4): s.e(f'ds_read_b128 v[{24+4*gm}:{27+4*gm}], v{56+gm}')
        s.e('s_waitcnt lgkmcnt(0)')
        for q in range(4):
            grp,a=q>>1,q&1; acc=40+4*q
            for gm in range(4):
                b=DB[grp]+4*(4*a+gm); c='0' if gm==0 else f'v[{acc}:{acc+3}]'
                s.e(f'v_mfma_f32_16x16x32_bf16 v[{acc}:{acc+3}], v[{24+4*gm}:{27+4*gm}], v[{b}:{b+3}], {c}')
            if q>=2:
                s.tag4(40+4*(q-2),8); s.e(f'buffer_store_dwordx4 v[{32+4*q}:{35+4*q}], v12, s[44:47], s{46+q} offen sc1')
        s.setexec(HALF)
        for q in (2,3):
            s.tag4(40+4*q,8); s.e(f'buffer_store_dwordx4 v[{40+4*q}:{43+4*q}], v12, s[44:47], s{48+q} offen sc1')
        s.setexec('-1')
        s.stamp(10)
        s.end()

    def xf_gather(s):
        s.e(f's_lshl_b32 s52, s4, 9\ns_add_u32 s52, s52, {W_XF}\ns_mov_b32 exec_hi, 0')
        s.poll(['buffer_load_dwordx4 v[8:11], v1, s[44:47], s52 offen sc1'],[8],5,sleep=4)
        s.e('v_cmp_ne_u32 vcc, s18, v8\ns_mov_b64 exec, -1\ns_cmp_eq_u64 vcc, 0\ns_cselect_b32 s19, 2, 1')
    def q_soff(s):
        s.e(f"""
        s_lshr_b32 s52, s5, 4
        s_lshl_b32 s53, s4, 1
        s_add_u32 s52, s52, s53
        s_lshl_b32 s52, s52, 10              ; hkv*1024
        s_bfe_u32 s53, s5, 0x20002
        s_lshl_b32 s53, s53, 14
        s_add_u32 s52, s52, s53
        s_add_u32 s52, s52, {W_QP}
        s_add_u32 s53, s52, 65536
        s_add_u32 s54, s52, 131072
        """)
    def transpose_store(s,voff,soff,loc=0):
        s.e(f'''
        ds_write_b32 v7, v16 offset:{TR}
        ds_write_b32 v7, v17 offset:{TR+256}
        ds_write_b32 v7, v18 offset:{TR+512}
        ds_write_b32 v7, v19 offset:{TR+768}
        ds_read_b128 v[16:19], v1 offset:{TR}
        s_waitcnt lgkmcnt(0)
        ''')
        s.tag4(16,13)
        if loc:
            a=s.lab('Lts'); b=s.lab('Lts')
            s.e(f's_cmp_eq_u32 s19, 2\ns_cbranch_scc0 {a}\nbuffer_store_dwordx4 v[16:19], v{voff}, s[44:47], s{soff} offen\ns_branch {b}\n{a}:')
        s.e(f'buffer_store_dwordx4 v[16:19], v{voff}, s[44:47], s{soff} offen sc1')
        if loc: s.e(f'{b}:')
    def comm(s):
        P=s.P
        s.e('L_comm:')
        s.stamp(1)
        s.ws_srd()
        s.srd(48,8,4608)
        s.e(f"""
        s_cmp_lt_u32 s2, 96
        s_cbranch_scc0 L_c_nx
        v_mul_u32_u24 v5, 72, v0
        buffer_load_dwordx4 v[64:67], v5, s[48:51], 0 offen
        buffer_load_dwordx4 v[68:71], v5, s[48:51], 0 offen offset:16
        buffer_load_dwordx4 v[72:75], v5, s[48:51], 0 offen offset:32
        buffer_load_dwordx4 v[76:79], v5, s[48:51], 0 offen offset:48
        buffer_load_dwordx2 v[80:81], v5, s[48:51], 0 offen offset:64
        L_c_nx:
        s_getreg_b32 s18, hwreg(HW_REG_XCC_ID, 0, 4)
        s_lshl_b32 s18, s18, 8
        v_mov_b32 v13, 0xff
        v_lshlrev_b32 v7, 2, v0
        """)
        s.part_addr(6,5)
        s.early_ids()
        s.tag_setup()
        for j in range(4): s.e(f's_or_b32 s52, s18, s{T0+j}\nv_mov_b32 v{8+j}, s52')
        s.e(f"""
        s_lshl_b32 s52, s4, 5
        s_add_u32 s52, s52, s5
        s_lshl_b32 s52, s52, 4
        s_add_u32 s52, s52, {W_XF}
        s_mov_b64 exec, 1
        buffer_store_dwordx4 v[8:11], v15, s[44:47], s52 offen sc1
        s_mov_b64 exec, -1
        s_cmp_lt_u32 s2, 96
        s_cbranch_scc1 L_c_q
        s_cmp_lt_u32 s101, 54
        s_cbranch_scc0 L_c_xf
        s_mul_i32 s55, s58, 18432
        s_lshl_b32 s53, s53, 10
        s_add_u32 s55, s55, s53
        s_add_u32 s55, s55, {W_MP}
        """)
        s.lds_spin(C_PART0,3,5,15)
        s.part_sum(6,16,PART0)
        s.tag4(16,13,rnd=True)
        s.e('buffer_store_dwordx4 v[16:19], v1, s[44:47], s55 offen sc1')
        s.stamp(2)
        s.e('L_c_xf:')
        s.lds_spin(C_MID,4,5,15,sleep=4)
        s.xf_gather()
        s.e(f"""
        s_sub_u32 s6, s5, 18
        s_cmp_lt_u32 s6, 9
        s_cbranch_scc0 L_c_gq
        s_lshl_b32 s52, s6, 7
        v_lshlrev_b32 v5, 1, v0
        """)
        for b in range(4): s.e(f'buffer_load_ushort v{40+b}, v5, s[48:51], s52 offen offset:{1152*b}')
        if P['PT']:
            s.e(f"""
            s_lshl_b32 s52, s6, 13
            s_add_u32 s56, s52, {W_S4}
            s_mul_i32 s52, s4, 9216
            s_lshl_b32 s53, s6, 8
            s_add_u32 s52, s52, s53
            s_add_u32 s58, s52, {W_X1}
            s_add_u32 s59, s58, 4608
            v_lshlrev_b32 v5, 7, v0
            """)
            if P['PT']&2: s.e('buffer_load_dword v250, v5, s[44:47], s56 offen sc1')
            for b in range(4): s.e(f'buffer_load_dword v250, v7, s[44:47], s{58+b//2} offen offset:{(b&1)*2304} sc1')
        s.e('s_branch L_c_gq\nL_c_q:\ns_waitcnt vmcnt(1)')
        for k in range(18): s.unpack(64+k,96+2*k,97+2*k)
        s.sums(96,36,16)
        s.stats_tail(16)
        s.e(f"""
        v_cvt_pk_bf16_f32 v18, v18, v18
        v_lshlrev_b32 v18, 16, v18
        v_sqrt_f32 v18, v18
        v_lshrrev_b32 v5, 4, v0
        v_cvt_pk_bf16_f32 v18, v18, v18
        v_lshlrev_b32 v18, 16, v18
        v_rcp_f32 v18, v18
        v_lshlrev_b32 v5, 2, v5
        s_mov_b32 exec_lo, 0x00010001
        s_mov_b32 exec_hi, 0x00010001
        ds_write_b32 v5, v16 offset:{STAT}
        ds_write_b32 v5, v18 offset:{STAT+16}
        """)
        s.lds_signal(C_ST,15,14)
        s.e(f"""
        s_lshl_b32 s55, s58, 16
        s_lshl_b32 s53, s53, 8
        s_add_u32 s55, s55, s53
        s_add_u32 s55, s55, {W_QP}
        v_lshrrev_b32 v5, 4, v0
        v_lshlrev_b32 v5, 14, v5
        v_and_b32 v12, 15, v0
        v_lshl_add_u32 v12, v12, 4, v5
        s_waitcnt vmcnt(0)
        """)
        s.xf_gather()
        if P['PT']:
            s.q_soff()
            s.e('v_lshlrev_b32 v5, 7, v0\ns_mov_b32 exec_lo, 0xff\ns_mov_b32 exec_hi, 0')
            for i in range(3): s.e(f'buffer_load_dword v250, v5, s[44:47], s{52+i} offen sc1')
            s.e('s_mov_b64 exec, -1')
        s.stamp(13)
        s.lds_spin(C_PART0,3,5,15)
        for u in range(2):
            for i in range(6): s.e(f'ds_read_b128 v[{16+24*u+4*i}:{19+24*u+4*i}], v6 offset:{(PART0,PART0B)[u]+i*PARTS}')
        for u in range(2):
            s.e(f's_waitcnt lgkmcnt({6 if u==0 else 4})')
            s.tree_sum(16+24*u,6,16+24*u)
            for j in range(4): s.e(f'ds_write_b32 v7, v{16+24*u+j} offset:{TR+1024*u+256*j}')
        s.e(f'ds_read_b128 v[16:19], v1 offset:{TR}\nds_read_b128 v[20:23], v1 offset:{TR+1024}\ns_cmp_eq_u32 s19, {2 if P["QLOC"] else 3}\ns_waitcnt lgkmcnt(0)')
        s.tag4(16,13,rnd=True); s.tag4(20,13,rnd=True)
        s.e("""s_cbranch_scc1 L_qp_loc
        buffer_store_dwordx4 v[16:19], v12, s[44:47], s55 offen sc1
        buffer_store_dwordx4 v[20:23], v12, s[44:47], s55 offen offset:256 sc1
        s_branch L_qp_done
        L_qp_loc:
        buffer_store_dwordx4 v[16:19], v12, s[44:47], s55 offen
        buffer_store_dwordx4 v[20:23], v12, s[44:47], s55 offen offset:256
        L_qp_done:""")
        s.stamp(2)
        s.e(f"""
        L_c_gq:
        """)
        if P['PT']:
            s.e(f"""
            v_lshlrev_b32 v5, 7, v0
            s_lshl_b32 s52, s4, 5
            s_add_u32 s52, s52, s5
            s_lshl_b32 s53, s52, 7
            s_add_u32 s53, s53, {W_ML}
            s_lshl_b32 s52, s52, 10
            s_add_u32 s52, s52, {W_OP}
            s_mov_b32 exec_lo, 0xff
            s_mov_b32 exec_hi, 0
            buffer_load_dword v250, v5, s[44:47], s52 offen sc1
            s_mov_b64 exec, 1
            buffer_load_dword v250, v5, s[44:47], s53 offen sc1
            s_mov_b64 exec, -1
            """)
        s.q_soff()
        s.e(f"""
        v_lshlrev_b32 v8, 3, v0
        s_and_b32 s55, s5, 1
        s_lshl_b32 s55, s55, 7
        s_add_u32 s55, s55, s52
        s_add_u32 s40, s34, s55
        s_addc_u32 s41, s35, 0
        """)
        hr=[10,11,12,13,14,15,16,17,20,21,22,23]; ho=[65536*(i//4)+256*(i%4) for i in range(12)]
        if not P['QLOC']:
            s.hint_issue(40,ho[:1],hr[:1]); s.hint_wait(40,ho[:1],hr[:1],4)
            s.hint_issue(40,ho[1:],hr[1:]); s.hint_wait(40,ho[1:],hr[1:],P['SLH'])
        s.e('v_mov_b32 v9, s19')
        s.stamp(12)
        s.vff=13
        s.poll2([f'buffer_load_dwordx4 v[{24+4*i}:{27+4*i}], v1, s[44:47], s{52+i} offen sc1' for i in range(3)],[24,28,32],5,sleep=P['SLQ'])
        s.tree_sum(24,3,20)
        s.e(f"""
        v_cvt_pk_bf16_f32 v20, v20, v21
        v_cvt_pk_bf16_f32 v21, v22, v23
        ds_write_b64 v8, v[20:21] offset:{QL}
        s_mov_b64 exec, 1
        ds_write_b32 v15, v9 offset:{C_Q}
        s_mov_b64 exec, -1
        """)
        s.stamp(3)
        s.e(f"""
        s_cmp_lt_u32 s2, 144
        s_cbranch_scc1 L_end
        s_cmp_lt_u32 s2, 216
        s_cbranch_scc1 L_c_wo
        s_cmp_lt_u32 s2, 252
        s_cbranch_scc0 L_end
        s_sub_u32 s6, s2, 216
        s_mul_i32 s52, s6, 7282
        s_lshr_b32 s52, s52, 16              ; /9
        s_mul_i32 s53, s52, 9
        s_sub_u32 s53, s6, s53
        s_mul_i32 s55, s52, 9216
        s_lshl_b32 s53, s53, 8
        s_add_u32 s55, s55, s53
        s_add_u32 s55, s55, {W_M2}
        v_lshrrev_b32 v5, 4, v0
        v_mul_u32_u24 v5, 2304, v5
        v_and_b32 v12, 15, v0
        v_lshl_add_u32 v12, v12, 4, v5
        """)
        s.lds_spin(C_PART,3,5,15,sleep=1)
        s.part_sum(6,16,PART)
        s.round_pairs(16,4,20)
        s.transpose_store(12,55)
        s.stamp(4)
        s.end()
        s.e(f'''
        L_c_wo:
        s_sub_u32 s6, s5, 18                 ; cb
        s_lshl_b32 s52, s6, 7
        v_lshlrev_b32 v5, 1, v0
        v_and_b32 v12, 3, v0
        v_lshlrev_b32 v12, 3, v12
        v_lshrrev_b32 v12, v12, s{T0+4}
        v_and_b32 v12, 0xff, v12
        s_lshl_b32 s53, s6, 8
        s_add_u32 s56, s53, {W_M2}
        s_add_u32 s57, s56, 4608
        s_add_u32 s58, s53, {W_M2+3*9216}
        s_add_u32 s59, s58, 4608
        ''')
        s.e('s_mov_b32 s24, s56\ns_mov_b32 s25, s57')
        galoads=[f'buffer_load_dword v{44+i}, v7, s[44:47], s{24+i//2} offen offset:{2304*(i&1)} sc1' for i in range(4)]
        for r in range(40,44): s.e(f'v_lshlrev_b32 v{r}, 16, v{r}')
        s.e(f'''
        s_lshl_b32 s52, s6, 13
        s_add_u32 s56, s52, {W_S4}
        s_add_u32 s57, s56, 4096
        s_lshl_b32 s52, s4, 10
        s_add_u32 s55, s56, s52
        s_mul_i32 s52, s4, 9216
        s_lshl_b32 s53, s6, 8
        s_add_u32 s52, s52, s53
        s_add_u32 s58, s52, {W_X1}
        s_add_u32 s59, s58, 4608
        v_and_b32 v9, 7, v0
        v_lshlrev_b32 v9, 3, v9
        v_add_u32 v9, s4, v9                 ; 8*jj + x
        v_lshrrev_b32 v10, 4, v0             ; b
        v_lshlrev_b32 v11, 4, v9
        v_lshl_add_u32 v11, v10, 2, v11
        v_mul_u32_u24 v10, 1152, v10
        v_lshl_add_u32 v10, v9, 1, v10
        ''')
        s.stamp(5)
        s.lds_spin(C_PART,3,5,15)
        s.part_sum(6,16,PART)
        s.tag4(16,13)
        s.e('buffer_store_dwordx4 v[16:19], v1, s[44:47], s55 offen sc1')
        s.stamp(6)
        for x in galoads: s.e(x)
        loads=[f'buffer_load_dwordx4 v[{64+4*i}:{67+4*i}], v1, s[44:47], s{56+i//4} offen offset:{(i&3)*1024} sc1' for i in range(8)]
        def acc(i):
            if i==1: s.pk('add',20,64,68,4)
            elif i>1: s.pk('add',20,20,64+4*i,4)
        s.poll2(loads,[64+4*i for i in range(8)],5)
        s.iters(13)
        s.tree_sum(64,8,20)
        s.poll(galoads,[44+i for i in range(4)],9,sleep=1,lanetag=12,issued=True)
        s.stamp(7)
        s.round_pairs(20,4,24); s.pk('mul',20,20,44,4)
        s.round_pairs(20,4,24); s.pk('add',20,20,40,4)
        s.round_pairs(20,4,24)
        for b in range(4): s.e(f'v_or_b32 v{24+b}, v12, v{20+b}')
        s.e('s_cmp_eq_u32 s19, 2\ns_cbranch_scc1 L_x1_loc')
        for b in range(4): s.e(f'buffer_store_dword v{24+b}, v7, s[44:47], s{58+b//2} offen offset:{(b&1)*2304} sc1')
        s.e('s_branch L_x1_done\nL_x1_loc:')
        for b in range(4): s.e(f'buffer_store_dword v{24+b}, v7, s[44:47], s{58+b//2} offen offset:{(b&1)*2304}')
        s.e('L_x1_done:')
        s.stamp(8)
        s.e(f's_lshl_b32 s53, s6, 8\ns_add_u32 s58, s53, {W_M2+3*9216}\ns_add_u32 s59, s58, 4608')
        s.poll([f'buffer_load_dword v{48+i}, v7, s[44:47], s{58+i//2} offen offset:{2304*(i&1)} sc1' for i in range(4)],[48+i for i in range(4)],9,sleep=4,lanetag=12)
        s.e(f'ds_write_b128 v1, v[48:51] offset:{TR+1024}')
        s.srd(48,30,4608)
        s.e(f'''
        ds_write_b128 v1, v[20:23] offset:{TR}
        ds_read_b32 v28, v11 offset:{TR}
        ds_read_b32 v29, v11 offset:{TR+1024}
        s_lshl_b32 s52, s6, 3
        s_add_u32 s52, s52, s4
        s_mul_i32 s52, s52, 18432
        s_add_u32 s52, s52, {W_S5}
        s_add_u32 s53, s52, 4096
        s_add_u32 s54, s52, 8192
        s_add_u32 s55, s52, 12288
        s_add_u32 s56, s52, 16384
        s_lshl_b32 s57, s6, 7
        v_mov_b32 v30, s{T0+4}
        s_waitcnt lgkmcnt(0)
        ''')
        loads=[f'buffer_load_dwordx4 v[{64+4*i}:{67+4*i}], v1, s[44:47], s{52+i//4} offen offset:{(i&3)*1024} sc1' for i in range(18)]
        if P['HINT']:
            s.e('s_mov_b32 exec_lo, 0xff\ns_mov_b32 exec_hi, 0')
            s.poll(loads[:1],[64],5)
            s.e('s_mov_b64 exec, -1')
        s.stamp(9)
        s.poll2(loads,[64+4*i for i in range(18)],5,first=True)
        s.iters(14)
        s.tree_sum(64,18,20)
        s.stamp(10)
        s.e(f'''
        v_permlane32_swap_b32 v20, v22
        v_permlane32_swap_b32 v21, v23
        v_pk_add_f32 v[20:21], v[20:21], v[22:23]
        v_permlane16_swap_b32 v20, v21
        v_add_f32 v20, v20, v21
        v_add_f32_dpp v20, v20, v20 row_ror:8 row_mask:0xf bank_mask:0xf
        v_cvt_pk_bf16_f32 v20, v20, v20
        v_lshlrev_b32 v20, 16, v20
        v_mul_f32 v20, v20, v29
        v_cvt_pk_bf16_f32 v20, v20, v20
        v_lshlrev_b32 v20, 16, v20
        v_add_f32 v20, v20, v28
        v_cvt_pk_bf16_f32 v20, v20, v20
        s_mov_b32 exec_lo, 0x00ff00ff
        s_mov_b32 exec_hi, 0x00ff00ff
        buffer_store_short v20, v10, s[48:51], s57 offen
        s_cmp_eq_u32 s2, 144
        s_cbranch_scc0 L_c_fin
        s_mov_b64 exec, 1
        buffer_store_dword v30, v15, s[44:47], 0 offen offset:{W_EP} sc1
        L_c_fin:
        s_mov_b64 exec, -1
        ''')
        s.stamp(11)
        s.end()

    def build(s):
        P=s.P
        assert P['D0']<=P['MID']<32 and P['D0']<=P['SIG']<32 and P['LTRIG']<32 and 0<=P['LNG']<P['LNG2']<40 and P['NF1']<16 and P['D0']<P['N0']<P['NA']<=P['NCU'] and P['D0']<=P['SIG0']<P['SIG'] and P['DQ']%2==0 and P['DLATE']<=P['DM2']<=11
        if s.P['STAMP']:
            for i in range(1,16): s.e(f's_mov_b32 s{64+2*i}, 0')
        s.stamp(0)
        s.e(f"""
        s_load_dwordx16 s[8:23], s[0:1], 0
        s_load_dwordx8 s[24:31], s[0:1], 64
        s_load_dwordx4 s[32:35], s[0:1], 96
        v_lshrrev_b32 v1, 6, v0
        s_cmp_ge_u32 s2, 256
        v_readfirstlane_b32 s3, v1
        s_cbranch_scc1 L_exit
        v_and_b32 v0, 63, v0
        s_and_b32 s4, s2, 7
        s_lshr_b32 s5, s2, 3
        s_cmp_lt_u32 s3, 4
        s_cbranch_scc1 L_kv
        s_sub_u32 s6, s5, 12
        s_sub_u32 s7, 37, s5
        s_cmp_lt_u32 s5, 18
        s_cselect_b32 s6, s6, s7             ; y' : 12..17 -> 0..5, 31 -> 6, 30 -> 7
        s_mul_i32 s6, s6, 7
        s_add_u32 s101, s6, s4
        s_cmp_eq_u32 s5, 30
        s_cselect_b32 s7, 3, 1
        s_sub_u32 s101, s101, s7
        s_cmp_lt_u32 s4, s7
        s_cselect_b32 s101, 99, s101
        s_cmp_lt_u32 s2, 96
        s_cselect_b32 s101, 0, s101
        s_cmp_lt_u32 s3, 7
        s_cbranch_scc1 L_w
        v_mov_b32 v12, 0
        v_mov_b32 v13, 0
        v_mov_b32 v14, 0
        v_mov_b32 v15, 0
        v_lshlrev_b32 v1, 4, v0
        ds_write_b128 v1, v[12:15] offset:{ZERO}
        s_getpc_b64 s[52:53]
        L_pc:
        s_and_b32 s54, s5, 7
        s_mul_i32 s54, s54, CODE_SLICE
        s_add_u32 s54, s54, 1024-(L_pc-{NAME})
        s_add_u32 s52, s52, s54
        s_addc_u32 s53, s53, 0
        """)
        if s.P['PREF']:
            for i in range(s.P['SLICE']//1024): s.e(f'global_load_dwordx4 v[24:27], v1, s[52:53] offset:{i*1024}')
        s.e('v_mov_b32 v14, 1\ns_waitcnt lgkmcnt(0)')
        s.tag_load()
        s.e('s_barrier\ns_branch L_comm')
        s.w_start()
        s.e('L_kv:')
        s.kv_start()
        s.e('L_firstkb:')
        s.kv(); s.wwave(); s.comm()
        s.e('L_end:'); s.end()
        if s.P['STAMP']:
            s.e('L_stampout:\ns_waitcnt vmcnt(0) lgkmcnt(0)\ns_memrealtime s[94:95]\ns_waitcnt lgkmcnt(0)')
            s.ws_srd()
            s.e(f's_lshl_b32 s2, s2, 3\ns_add_u32 s2, s2, s3\ns_lshl_b32 s2, s2, 6\ns_add_u32 s2, s2, {W_ST}\nv_mov_b32 v0, 0\ns_mov_b64 exec, 1')
            for q in range(4):
                for j in range(4): s.e(f'v_mov_b32 v{4+j}, s{64+2*(4*q+j)}')
                s.e(f'buffer_store_dwordx4 v[4:7], v0, s[44:47], s2 offen offset:{16*q}\ns_nop 1')
        s.e('L_exit:\ns_endpgm')
        lines,probs=fix_hazards(s.L)
        for p in probs: print('HAZARD EDGE',p,file=sys.stderr)
        return lines

def generate(P={}):
    g=G(P); lines=g.build()
    ref=open('adaLN_cond__sliding_block_cached__glu_gated_geglu__decode.s.ref').read().split('\n')
    hdr=[l for l in ref[:ref.index('.amdgcn_target "amdgcn-amd-amdhsa--gfx950"')] if '@launch' not in l]
    out='\n'.join(hdr)+f'\n; @launch grid=(256,1,1) block=(512,1,1) lds={LDSZ}\n'
    out+=f'.amdgcn_target "amdgcn-amd-amdhsa--gfx950"\n.text\n.p2align 12\n.set CODE_SLICE, {g.P["SLICE"]}\n.globl {NAME}\n.p2align 8\n.type {NAME},@function\n{NAME}:\n'
    for l in lines: out+=(l if l.endswith(':') or l.startswith('.') else '    '+l)+'\n'
    out+=f'''L_codeend:
.fill (8*CODE_SLICE+1024-(L_codeend-{NAME}))/4, 4, 0xbf810000
.section .rodata,"a"
.p2align 6
.amdhsa_kernel {NAME}
  .amdhsa_next_free_vgpr 256
  .amdhsa_next_free_sgpr 102
  .amdhsa_accum_offset 256
  .amdhsa_group_segment_fixed_size 0
  .amdhsa_kernarg_size 112
  .amdhsa_user_sgpr_count 2
  .amdhsa_user_sgpr_kernarg_segment_ptr 1
  .amdhsa_system_sgpr_workgroup_id_x 1
  .amdhsa_float_denorm_mode_32 3
.end_amdhsa_kernel
'''
    return out
if __name__=='__main__':
    P={}
    for a in sys.argv[2:]:
        k,v=a.split('='); P[k]=int(v)
    open(sys.argv[1],'w').write(generate(P))
```

```python
import sys, struct
sys.path.insert(0,'work')
from asmlib import fix_hazards
NAME='adaLN_cond__sliding_block_cached__glu_gated_geglu__decode_kernel'
def f2u(x): return struct.unpack('<I',struct.pack('<f',x))[0]
LOG2E=1.4426950408889634
ACT=0; ACTS=1168; PART=4672; PARTS=1152; OC=11584; HH=15680; TR=16448; ZERO=18496; CNT=19008; MX=19072; STAT=19104; QL=19136
EACT=19648; EACTS=400; PART0=21248; PART0B=PART0+6912; KL=36864; LDSZ=KL+65536
C_ACT,C_PART,C_PART0,C_KV,C_MX,C_OC,C_OK2,C_LATE,C_WIS,C_ST,C_Q,C_MID,C_QIS=[CNT+4*i for i in range(13)]
W_EP=0; W_XF=4096; W_MP=8192; W_QP=65536; W_M2=W_QP+196608; W_ML=W_M2+36864; W_OP=W_ML+32768; W_S4=W_OP+262144; W_X1=W_S4+589824; W_S5=W_X1+73728
W_ST=4<<20; WSZ=8<<20
BOUND=400000
T0=96
DEF=dict(PUSH=0,DQ0=4,MPV=2,ROT=2,PFA=1,PFB=0,PFW=1,ORD=1,NGA=9,NE3=28,FL3=32,NM2=14,PM3=0,PM4=0,PM5=0,QREL=0,QPIPE=12,DH=7,NCU=16,QHOLD=1,NA=4,SIG0=8,PT=3,DM2=3,MID=10,DLY=0,MPH=0,QLOC=1,FL1=84,NF1=8,LNG2=39,SLM=0,SLQ=2,D0=1,N0=2,D1=4,NLO=10,D2=4,NMID=16,D3=4,DQ=10,LTRIG=1,DLATE=4,FL=84,LNG=36,SIG=31,STAMP=0,PREF=1,HINT=1,COOP=1,G1NT=0,SLICE=3072,SLH=2)
HALF='0x00ff00ff00ff00ff'; E48='0xffffffffffff'

ROTC={0:'s_mov_b32 s54, 0',1:'s_add_u32 s54, s6, s7',2:'s_add_u32 s54, s5, s3',3:'s_add_u32 s54, s6, s3',4:'s_mov_b32 s54, s3',5:'s_mov_b32 s54, s5'}
class G:
    def __init__(s,P):
        s.L=[]; s.P=dict(DEF); s.P.update(P); s.n=0
    def e(s,t):
        for l in t.split('\n'):
            l=l.strip()
            if l: s.L.append(l)
    def lab(s,p='L'):
        s.n+=1; return f'{p}_{s.n}'
    def stamp(s,i):
        if s.P['STAMP']: s.e(f's_memrealtime s[{64+2*i}:{65+2*i}]')
    def iters(s,i):
        if s.P['STAMP']: s.e(f's_sub_u32 s{64+2*i}, {BOUND}, s62\ns_mul_i32 s{64+2*i}, s{64+2*i}, 1000\ns_add_u32 s{64+2*i}, s{64+2*i}, s64')
    def end(s):
        s.e('s_branch L_stampout' if s.P['STAMP'] else 's_endpgm')
    def ws_srd(s):
        s.e(f's_mov_b32 s44, s34\ns_mov_b32 s45, s35\ns_mov_b32 s46, {WSZ}\ns_mov_b32 s47, 0x20000')
    def srd(s,d,p,n):
        s.e(f's_mov_b32 s{d}, s{p}\ns_mov_b32 s{d+1}, s{p+1}\ns_mov_b32 s{d+2}, {n}\ns_mov_b32 s{d+3}, 0x20000')
    def tag_load(s): s.e(f's_load_dword s{T0+4}, s[34:35], {W_EP}')
    def tag_setup(s):
        s.e(f's_waitcnt lgkmcnt(0)\ns_add_u32 s{T0+4}, s{T0+4}, 0x01010101')
        for j in range(4): s.e(f's_bfe_u32 s{T0+j}, s{T0+4}, {0x80000+8*j:#x}')
    def tag4(s,r,vff,rnd=False):
        if rnd:
            for j in range(4): s.e(f'v_add_u32 v{r+j}, 0x80, v{r+j}')
        for j in range(4): s.e(f'v_bfi_b32 v{r+j}, v{vff}, s{T0+j}, v{r+j}')
    def lds_spin(s,addr,val,vt,vz,sleep=0):
        l=s.lab('Lsp'); s.e(f'{l}:')
        if sleep: s.e(f's_sleep {sleep}')
        s.e(f'ds_read_b32 v{vt}, v{vz} offset:{addr}\ns_waitcnt lgkmcnt(0)\nv_cmp_gt_u32 vcc, {val}, v{vt}\ns_cbranch_vccnz {l}')
    def lds_signal(s,addr,vz,vone,restore='-1'):
        s.e(f's_mov_b64 exec, 1\nds_add_u32 v{vz}, v{vone} offset:{addr}')
        s.setexec(restore)
    def setexec(s,m):
        if m in('-1','1'): s.e(f's_mov_b64 exec, {m}')
        else:
            m=int(m,0); s.e(f's_mov_b32 exec_lo, {m&0xffffffff:#x}\ns_mov_b32 exec_hi, {m>>32:#x}')
    def poll(s,loads,regs,vt,body=None,sleep=0,lanetag=None,issued=False):
        l=s.lab('Lpo'); d=s.lab('Lpd'); n=len(loads)
        l0=s.lab('Lp0')
        if issued:
            s.e(f's_mov_b32 s62, {BOUND}\ns_branch {l0}\n{l}:')
            if sleep: s.e(f's_sleep {sleep}')
            s.e(f's_sub_u32 s62, s62, 1\ns_cbranch_scc1 {d}')
        elif sleep:
            s.e(f's_mov_b32 s62, {BOUND}\ns_branch {l0}\n{l}:\ns_sleep {sleep}\ns_sub_u32 s62, s62, 1\ns_cbranch_scc1 {d}\n{l0}:')
        else:
            s.e(f's_mov_b32 s62, {BOUND}\n{l}:\ns_sub_u32 s62, s62, 1\ns_cbranch_scc1 {d}')
        for x in loads: s.e(x)
        if issued: s.e(f'{l0}:')
        for i in range(n):
            s.e(f's_waitcnt vmcnt({n-1-i})')
            r=regs[i]
            if lanetag is not None:
                s.e(f'v_xor_b32 v{r}, v{lanetag}, v{r}')
                s.e(f'v_mov_b32 v{vt}, v{r}' if i==0 else f'v_or_b32 v{vt}, v{vt}, v{r}')
            else:
                for j in range(4): s.e(f'v_xor_b32 v{r+j}, s{T0+j}, v{r+j}')
                if i==0: s.e(f'v_or3_b32 v{vt}, v{r}, v{r+1}, v{r+2}\nv_or_b32 v{vt}, v{vt}, v{r+3}')
                else: s.e(f'v_or3_b32 v{vt}, v{vt}, v{r}, v{r+1}\nv_or3_b32 v{vt}, v{vt}, v{r+2}, v{r+3}')
            if body: body(i)
        s.e(f'v_and_b32 v{vt}, 0xff, v{vt}\nv_cmp_ne_u32 vcc, 0, v{vt}\ns_cbranch_vccnz {l}\n{d}:')
    def poll2(s,loads,regs,vt,sleep=0,onvalid=None,first=False):
        s.poll(loads,regs,vt,body=onvalid,sleep=sleep)
    def pollm(s,loads,regs,vt,masks,full='-1',grp=1,peel=False):
        n=len(loads); l=s.lab('Lm'); d=s.lab('Lmd'); c=s.lab('Lmc')
        def checks(first):
            for i in range(n):
                m=masks[i//grp]; r=regs[i]
                if first: s.e(f's_waitcnt vmcnt({n-1-i})')
                elif i%grp==0: s.e(f's_mov_b64 exec, s[{m}:{m+1}]')
                for j in range(4): s.e(f'v_xor_b32 v{r+j}, s{T0+j}, v{r+j}')
                last=(i%grp==grp-1 or i==n-1)
                if i%grp==0: s.e(f'v_or3_b32 v{vt}, v{r}, v{r+1}, v{r+2}')
                else: s.e(f'v_or3_b32 v{vt}, v{vt}, v{r}, v{r+1}\nv_or3_b32 v{vt}, v{vt}, v{r+2}, v{regs[i-1]+3}')
                if last: s.e(f'v_bitop3_b32 v{vt}, v{vt}, v{r+3}, v{s.vff} bitop3:0xa8\nv_cmp_ne_u32 s[{m}:{m+1}], 0, v{vt}')
        s.e(f's_mov_b32 s62, {BOUND}')
        if peel:
            for x in loads: s.e(x)
            checks(True)
            s.e(f's_branch {c}')
        else:
            for m in masks: s.e(f's_mov_b64 s[{m}:{m+1}], exec')
        s.e(f'{l}:')
        for i in range(n):
            if i%grp==0: m=masks[i//grp]; s.e(f's_mov_b64 exec, s[{m}:{m+1}]')
            s.e(loads[i])
        s.e('s_waitcnt vmcnt(0)')
        checks(False)
        s.e(f's_sub_u32 s62, s62, 1\ns_cbranch_scc1 {d}\n{c}:')
        s.e(f's_or_b64 vcc, s[{masks[0]}:{masks[0]+1}], s[{masks[1]}:{masks[1]+1}]')
        for m in masks[2:]: s.e(f's_or_b64 vcc, vcc, s[{m}:{m+1}]')
        s.e(f's_cbranch_scc1 {l}\n{d}:')
        s.setexec(full)
    def tree_sum(s,base,n,dst):
        idx=[base+4*i for i in range(n)]
        while len(idx)>2:
            nx=[]
            for k in range(0,len(idx)-1,2): s.pk('add',idx[k],idx[k],idx[k+1],4); nx.append(idx[k])
            if len(idx)&1: nx.append(idx[-1])
            idx=nx
        s.pk('add',dst,idx[0],idx[1],4)
    def hint_issue(s,base,offs,regs):
        for o,r in zip(offs,regs): s.e(f's_load_dword s{r}, s[{base}:{base+1}], {o:#x} glc')
    def hint_wait(s,base,offs,regs,sleep):
        l=s.lab('Lh'); d=s.lab('Lhd')
        s.e(f's_mov_b32 s62, {BOUND}\n{l}:\ns_waitcnt lgkmcnt(0)')
        for r in regs: s.e(f's_xor_b32 s{r}, s{r}, s{T0}')
        for r in regs[1:]: s.e(f's_or_b32 s{regs[0]}, s{regs[0]}, s{r}')
        s.e(f's_and_b32 s{regs[0]}, s{regs[0]}, 0xff\ns_cbranch_scc0 {d}\ns_sub_u32 s62, s62, 1\ns_cbranch_scc1 {d}')
        if sleep: s.e(f's_sleep {sleep}')
        s.hint_issue(base,offs,regs)
        s.e(f's_branch {l}\n{d}:')
    def unpack(s,src,lo,hi):
        if hi==src: s.e(f'v_lshlrev_b32 v{lo}, 16, v{src}\nv_and_b32 v{hi}, 0xffff0000, v{src}')
        else: s.e(f'v_and_b32 v{hi}, 0xffff0000, v{src}\nv_lshlrev_b32 v{lo}, 16, v{src}')
    def round_pairs(s,base,n,tmp):
        for k in range(n//2): s.e(f'v_cvt_pk_bf16_f32 v{tmp+k}, v{base+2*k}, v{base+2*k+1}')
        for k in range(n//2): s.unpack(tmp+k,base+2*k,base+2*k+1)
    def pk(s,op,d,a,b,n,mods=''):
        for k in range(0,n,2): s.e(f'v_pk_{op}_f32 v[{d+k}:{d+k+1}], v[{a+k}:{a+k+1}], v[{b+k}:{b+k+1}] {mods}')
    def perms(s,src,dst):
        for e_ in range(8):
            for rp in range(4):
                a=src+4*(2*rp)+(e_>>1); b=src+4*(2*rp+1)+(e_>>1)
                s.e(f'v_perm_b32 v{dst+4*e_+rp}, v{b}, v{a}, s{60+(e_&1)}')
    def stats_tail(s,t):
        s.e(f'''v_mul_f32 v{t}, {f2u(1/576):#x}, v{t}
        v_mul_f32 v{t+2}, {f2u(1/576):#x}, v{t+2}
        v_fma_f32 v{t+2}, -v{t}, v{t}, v{t+2}
        v_max_f32 v{t+2}, 0, v{t+2}
        v_cvt_pk_bf16_f32 v{t+1}, v{t}, v{t+2}
        v_and_b32 v{t+2}, 0xffff0000, v{t+1}
        v_lshlrev_b32 v{t}, 16, v{t+1}
        v_add_f32 v{t+2}, {f2u(1e-5):#x}, v{t+2}''')
    def sums(s,X,n,t):
        s.e(f'v_pk_add_f32 v[{t}:{t+1}], v[{X}:{X+1}], v[{X+2}:{X+3}]')
        s.e(f'v_pk_mul_f32 v[{t+2}:{t+3}], v[{X}:{X+1}], v[{X}:{X+1}]')
        s.e(f'v_pk_fma_f32 v[{t+2}:{t+3}], v[{X+2}:{X+3}], v[{X+2}:{X+3}], v[{t+2}:{t+3}]')
        for k in range(2,n//2):
            s.e(f'v_pk_add_f32 v[{t}:{t+1}], v[{t}:{t+1}], v[{X+2*k}:{X+2*k+1}]')
            s.e(f'v_pk_fma_f32 v[{t+2}:{t+3}], v[{X+2*k}:{X+2*k+1}], v[{X+2*k}:{X+2*k+1}], v[{t+2}:{t+3}]')
        s.e(f'v_add_f32 v{t}, v{t}, v{t+1}\nv_add_f32 v{t+2}, v{t+2}, v{t+3}')
        for r in (1,2,4,8):
            s.e(f'v_add_f32_dpp v{t}, v{t}, v{t} row_ror:{r} row_mask:0xf bank_mask:0xf')
            s.e(f'v_add_f32_dpp v{t+2}, v{t+2}, v{t+2} row_ror:{r} row_mask:0xf bank_mask:0xf')
    def layernorm(s,X,t):
        s.sums(X,12,t)
        s.e(f'''v_readlane_b32 s52, v{t}, 0
        v_readlane_b32 s53, v{t}, 16
        v_readlane_b32 s54, v{t}, 32
        v_readlane_b32 s55, v{t+2}, 0
        v_readlane_b32 s56, v{t+2}, 16
        v_readlane_b32 s57, v{t+2}, 32
        v_mov_b32 v{t}, s52
        v_add_f32 v{t}, s53, v{t}
        v_mov_b32 v{t+2}, s55
        v_add_f32 v{t}, s54, v{t}
        v_add_f32 v{t+2}, s56, v{t+2}
        v_add_f32 v{t+2}, s57, v{t+2}''')
        s.stats_tail(t)
        sub=lambda k: s.e(f'v_pk_add_f32 v[{X+2*k}:{X+2*k+1}], v[{X+2*k}:{X+2*k+1}], v[{t}:{t+1}] op_sel_hi:[1,0] neg_lo:[0,1] neg_hi:[0,1]')
        s.e(f'v_cvt_pk_bf16_f32 v{t+2}, v{t+2}, v{t+2}'); sub(0)
        s.e(f'v_lshlrev_b32 v{t+2}, 16, v{t+2}'); sub(1)
        s.e(f'v_sqrt_f32 v{t+2}, v{t+2}')
        for k in range(2,6): sub(k)
        s.e(f'v_cvt_pk_bf16_f32 v{t+2}, v{t+2}, v{t+2}\nv_lshlrev_b32 v{t+2}, 16, v{t+2}\nv_rcp_f32 v{t+2}, v{t+2}')
        s.round_pairs(X,12,t+4)
        for k in range(6): s.e(f'v_pk_mul_f32 v[{X+2*k}:{X+2*k+1}], v[{X+2*k}:{X+2*k+1}], v[{t+2}:{t+3}] op_sel_hi:[1,0]')
        s.round_pairs(X,12,t+4)
    def silu(s,X,n,t):
        for k in range(n): s.e(f'v_mul_f32 v{t+k}, {f2u(-LOG2E):#x}, v{X+k}')
        for k in range(n): s.e(f'v_min_f32 v{t+k}, {f2u(126.0):#x}, v{t+k}')
        for k in range(n): s.e(f'v_exp_f32 v{t+k}, v{t+k}')
        for k in range(n): s.e(f'v_add_f32 v{t+k}, 1.0, v{t+k}')
        for k in range(n): s.e(f'v_rcp_f32 v{t+n+k}, v{t+k}')
        for k in range(0,n,2):
            q=t+2*n
            s.e(f'v_pk_mul_f32 v[{q}:{q+1}], v[{X+k}:{X+k+1}], v[{t+n+k}:{t+n+k+1}]')
            s.e(f'v_pk_fma_f32 v[{X+k}:{X+k+1}], v[{q}:{q+1}], v[{t+k}:{t+k+1}], v[{X+k}:{X+k+1}] neg_lo:[1,0,0] neg_hi:[1,0,0]')
            s.e(f'v_pk_fma_f32 v[{X+k}:{X+k+1}], v[{X+k}:{X+k+1}], v[{t+n+k}:{t+n+k+1}], v[{q}:{q+1}]')
    def stage4(s,X,t,va,stride,off):
        s.e(f'''v_cvt_pk_bf16_f32 v{t}, v{X}, v{X+1}
        v_cvt_pk_bf16_f32 v{t+1}, v{X+2}, v{X+3}
        ds_write_b16 v{va}, v{t} offset:{off}
        ds_write_b16_d16_hi v{va}, v{t} offset:{off+stride}
        ds_write_b16 v{va}, v{t+1} offset:{off+2*stride}
        ds_write_b16_d16_hi v{va}, v{t+1} offset:{off+3*stride}''')

    def kv_start(s):
        P=s.P
        s.e(f"""
        s_lshr_b32 s6, s5, 4
        s_lshl_b32 s7, s4, 1
        s_add_u32 s6, s6, s7                ; hkv
        s_bfe_u32 s7, s5, 0x20002           ; b
        s_lshl_b32 s52, s7, 4
        s_add_u32 s52, s52, s6
        s_lshl_b32 s52, s52, 20             ; (b*16+hkv)<<20
        s_and_b32 s53, s5, 3
        s_lshl_b32 s53, s53, 2
        s_add_u32 s53, s53, s3
        s_add_u32 s53, s53, 48
        s_lshl_b32 s53, s53, 14             ; 3072*256 + (split*4+w)*16384
        s_add_u32 s52, s52, s53
        v_lshrrev_b32 v15, 4, v0            ; g
        v_and_b32 v14, 15, v0               ; i
        v_lshlrev_b32 v13, 8, v15
        v_xor_b32 v7, v14, v15
        v_xor_b32 v8, 4, v7
        v_xor_b32 v9, 8, v7
        v_xor_b32 v10, 12, v7
        v_lshl_add_u32 v1, v7, 4, v13
        v_lshl_add_u32 v2, v8, 4, v13
        v_lshl_add_u32 v3, v9, 4, v13
        v_lshl_add_u32 v4, v10, 4, v13
        s_lshl_b32 s48, s3, 14
        s_add_u32 s48, s48, {KL}
        {ROTC[P['ROT']]}
        s_and_b32 s54, s54, 3
        s_lshl_b32 s54, s54, 12
        s_xor_b32 s55, s54, 0x1000
        s_xor_b32 s56, s54, 0x2000
        s_xor_b32 s57, s54, 0x3000
        s_movk_i32 s38, 0x4000
        s_mov_b32 s39, 0x20000
        s_mov_b32 m0, s48
        s_waitcnt lgkmcnt(0)
        s_add_u32 s36, s10, s52
        s_addc_u32 s37, s11, 0
        """)
        if P['DLY']: s.e(f's_sleep {P["DLY"]}')
        for t in range(P['D0']): s.kload(t)
        s.tag_load()
        s.e('s_barrier')
    def thr(s,n):
        P=s.P; D=P['D0'] if n<P['N0'] else P['D1'] if n<P['NLO'] else (P['D2'] if n<P['NMID'] else P['D3'])
        if P['QHOLD'] and P['NA']<=n<P['NCU']:
            l=s.lab('Lt')
            s.e(f's_cbranch_vccnz {l}\ns_waitcnt vmcnt({D-1})\n{l}:\ns_waitcnt vmcnt({P["DH"]-1})')
        elif n>=P['NCU']:
            l=s.lab('Lt')
            s.e(f's_waitcnt lgkmcnt(0)\nv_cmp_ne_u32 vcc, s49, v48\ns_cbranch_vccnz {l}\ns_waitcnt vmcnt({D-1})\n{l}:\ns_waitcnt vmcnt({P["DH"]-1})')
        elif n>=D: s.e(f's_waitcnt vmcnt({D-1})')
    def kload(s,t):
        if t and t%4==0: s.e(f's_add_u32 m0, s48, {(t//4)*4096}')
        s.thr(t)
        s.e(f'buffer_load_dwordx4 v{1+(t&3)}, s[36:39], s{54+t//4} offen offset:{(t&3)*1024} nt lds')
    def kv(s):
        P=s.P
        s.stamp(1)
        sc=f2u(128**-0.5)
        s.e(f"""
        s_add_u32 s40, s12, s52
        s_addc_u32 s41, s13, 0
        s_movk_i32 s42, 0x4000
        s_mov_b32 s43, 0x20000
        v_lshlrev_b32 v5, 10, v15
        v_lshl_add_u32 v5, v14, 4, v5       ; V voffset g*1024+i*16
        v_lshrrev_b32 v6, 3, v14
        v_lshlrev_b32 v52, 4, v6            ; h*16 (h = i>>3)
        v_lshlrev_b32 v6, 8, v6
        v_lshl_add_u32 v6, v15, 4, v6
        v_lshlrev_b32 v13, 8, v14
        v_add_u32 v13, s48, v13
        v_lshl_add_u32 v7, v7, 4, v13
        v_lshl_add_u32 v8, v8, 4, v13
        v_lshl_add_u32 v9, v9, 4, v13
        v_lshl_add_u32 v10, v10, 4, v13
        v_and_b32 v13, 1, v0
        v_lshlrev_b32 v13, 4, v13
        v_mov_b32 v48, 0xffff
        v_lshlrev_b32 v48, v13, v48
        v_bfe_u32 v13, v0, 1, 2
        v_cmp_eq_u32 vcc, 0, v13
        v_cndmask_b32 v11, 0, v48, vcc
        v_cmp_eq_u32 vcc, 1, v13
        v_cndmask_b32 v12, 0, v48, vcc
        v_cmp_eq_u32 vcc, 3, v13
        v_cndmask_b32 v14, 0, v48, vcc
        v_cmp_eq_u32 vcc, 2, v13
        v_cndmask_b32 v13, 0, v48, vcc
        v_mov_b32 v15, 0
        v_mov_b32 v192, 1
        v_mov_b32 v193, 0xff
        s_lshl_b32 s60, s3, 2
        v_add_u32 v53, s60, v52
        v_lshrrev_b32 v54, 5, v0
        v_lshlrev_b32 v54, 4, v54           ; h2*16 (h2 = lane>>5)
        v_add_u32 v55, s60, v54
        v_lshlrev_b32 v56, 4, v0            ; 16*lane
        s_lshl_b32 s62, s3, 10
        v_add_u32 v57, s62, v56
        v_lshlrev_b32 v58, 1, v0
        s_lshl_b32 s61, s4, 5
        s_add_u32 s61, s61, s5
        s_lshl_b32 s58, s61, 7
        s_lshl_b32 s62, s3, 5
        s_add_u32 s58, s58, s62
        s_add_u32 s58, s58, {W_ML}
        s_lshl_b32 s59, s61, 10
        s_add_u32 s59, s59, {W_OP}
        s_mov_b32 s18, {sc:#x}
        s_mov_b32 s19, {sc:#x}
        s_mov_b32 s50, {f2u(LOG2E):#x}
        s_mov_b32 s51, {f2u(LOG2E):#x}
        s_cmp_lt_u32 s2, {96 if P['QHOLD'] else 0}
        s_cselect_b32 s49, -1, 0
        """)
        s.ws_srd()
        s.tag_setup()
        for n in range(P['D0'],32):
            if n<16: s.kload(n)
            else:
                k=n-16; s.thr(n)
                s.e(f'buffer_load_dwordx4 v[{64+4*k}:{67+4*k}], v5, s[40:43], s{54+k//4} offen offset:{(k&3)*256} nt')
            if P['NCU']-1<=n<31: s.e(f'ds_read_b32 v48, v15 offset:{C_Q}')
            if n==P['N0']-1 and P['QHOLD']:
                s.e('s_cmp_lt_u32 s2, 96\ns_cbranch_scc0 L_kv_nq'); s.lds_spin(C_QIS,3,48,15,sleep=1); s.e('L_kv_nq:')
            if n==P['NA']-1 and P['QHOLD']:
                s.e('s_cmp_lt_u32 s2, 96\ns_cbranch_scc0 L_kv_nq2'); s.lds_spin(C_QIS,6,48,15,sleep=1); s.e('L_kv_nq2:\ns_cselect_b64 vcc, -1, 0')
            if n==P['SIG0']: s.lds_signal(C_KV,15,192)
            if n==P['LTRIG']: s.lds_signal(C_LATE,15,192)
            if n==P['MID']: s.lds_signal(C_MID,15,192)
            if n==15: s.stamp(2)
            if n==P['SIG']: s.lds_signal(C_KV,15,192)
            if n==29:
                assert P['D3']<14 and P['DH']<14
                for T in range(4):
                    for st in range(4): s.e(f'ds_read_b128 v[{128+16*T+4*st}:{131+16*T+4*st}], v{7+st} offset:{T*4096}')
        s.stamp(10)
        s.lds_spin(C_Q,1,48,15)
        for st in range(4): s.e(f'ds_read_b128 v[{16+4*st}:{19+4*st}], v6 offset:{QL+64*st}')
        s.e('v_readfirstlane_b32 s53, v48')
        s.stamp(3)
        s.e('s_waitcnt lgkmcnt(0)')
        for T in range(4):
            for st in range(4):
                c='0' if st==0 else f'v[{32+4*T}:{35+4*T}]'
                s.e(f'v_mfma_f32_16x16x32_bf16 v[{32+4*T}:{35+4*T}], v[{128+16*T+4*st}:{131+16*T+4*st}], v[{16+4*st}:{19+4*st}], {c}')
        s.round_pairs(32,16,16)
        for k in range(8): s.e(f'v_pk_mul_f32 v[{32+2*k}:{33+2*k}], v[{32+2*k}:{33+2*k}], s[18:19]')
        s.round_pairs(32,16,16)
        s.e('v_max3_f32 v48, v32, v33, v34')
        for k in range(35,47,2): s.e(f'v_max3_f32 v48, v48, v{k}, v{k+1}')
        s.e(f'''v_max_f32 v48, v48, v47
        v_mov_b32 v49, v48
        v_permlane16_swap_b32 v48, v49
        v_max_f32 v48, v48, v49
        v_mov_b32 v49, v48
        v_permlane32_swap_b32 v48, v49
        v_max_f32 v48, v48, v49              ; m (head i>>3)
        s_mov_b32 exec_lo, 0x101
        s_mov_b32 exec_hi, 0
        ds_write_b32 v53, v48 offset:{MX}''')
        s.lds_signal(C_MX,15,192)
        s.e(f'v_mul_f32 v50, {f2u(-LOG2E):#x}, v48')
        for k in range(8): s.e(f'v_pk_fma_f32 v[{32+2*k}:{33+2*k}], v[{32+2*k}:{33+2*k}], s[50:51], v[50:51] op_sel_hi:[1,1,0]')
        for k in range(16): s.e(f'v_exp_f32 v{32+k}, v{32+k}')
        s.e('v_pk_add_f32 v[50:51], v[32:33], v[34:35]')
        for k in range(2,8): s.e(f'v_pk_add_f32 v[50:51], v[50:51], v[{32+2*k}:{33+2*k}]')
        s.e('''v_add_f32 v50, v50, v51
        v_mov_b32 v51, v50
        v_permlane16_swap_b32 v50, v51
        v_add_f32 v50, v50, v51
        v_mov_b32 v51, v50
        v_permlane32_swap_b32 v50, v51
        v_add_f32 v50, v50, v51              ; l (head i>>3)''')
        s.stamp(4)
        s.lds_spin(C_MX,4,49,15)
        s.e(f'''
        ds_read_b128 v[16:19], v52 offset:{MX}
        ds_read_b128 v[20:23], v54 offset:{MX}
        ds_read_b32 v60, v55 offset:{MX}
        ''')
        def pbuild(k):
            s.e(f'v_cvt_pk_bf16_f32 v{32+k}, v{32+k}, v{32+k}')
            for dw in range(4): s.e(f'v_and_b32 v{128+4*k+dw}, v{32+k}, v{11+dw}')
        pbuild(0); pbuild(1)
        s.e(f'''
        s_waitcnt lgkmcnt(0)
        v_max3_f32 v16, v16, v17, v18
        v_max3_f32 v20, v20, v21, v22
        v_max_f32 v16, v16, v19
        v_max_f32 v20, v20, v23
        v_sub_f32 v48, v48, v16
        v_sub_f32 v60, v60, v20
        v_mul_f32 v48, s50, v48
        v_mul_f32 v60, s50, v60
        v_exp_f32 v48, v48
        v_exp_f32 v60, v60
        v_mul_f32 v17, v48, v50
        ''')
        s.tag4(16,193)
        s.e(f'''
        s_mov_b32 exec_lo, 0x101
        s_mov_b32 exec_hi, 0
        s_cmp_eq_u32 s53, 2
        s_cbranch_scc1 L_ml_loc
        buffer_store_dwordx4 v[16:19], v58, s[44:47], s58 offen sc1
        s_branch L_ml_done
        L_ml_loc:
        buffer_store_dwordx4 v[16:19], v58, s[44:47], s58 offen
        L_ml_done:
        s_mov_b64 exec, -1
        ''')
        def pv(k):
            s.e(f's_waitcnt vmcnt({16-k})')
            c='0' if k==0 else 'v[24:27]'
            s.e(f'v_mfma_f32_16x16x32_bf16 v[24:27], v[{128+4*k}:{131+4*k}], v[{64+4*k}:{67+4*k}], {c}')
        for k in range(2,16):
            pbuild(k)
            if k<12: pv(k-2)
        for k in range(10,16): pv(k)
        s.stamp(5)
        s.e(f'''
        v_pk_mul_f32 v[24:25], v[24:25], v[60:61] op_sel_hi:[1,0]
        v_pk_mul_f32 v[26:27], v[26:27], v[60:61] op_sel_hi:[1,0]
        ds_write_b128 v57, v[24:27] offset:{OC}
        s_mov_b64 exec, 1
        ds_add_rtn_u32 v48, v15, v192 offset:{C_OC}
        s_waitcnt lgkmcnt(0)
        v_cmp_eq_u32 vcc, 3, v48
        s_mov_b64 exec, -1
        s_cbranch_vccz L_kv_tail
        ds_read_b128 v[32:35], v56 offset:{OC}
        ds_read_b128 v[36:39], v56 offset:{OC+1024}
        ds_read_b128 v[44:47], v56 offset:{OC+2048}
        ds_read_b128 v[48:51], v56 offset:{OC+3072}
        s_waitcnt lgkmcnt(2)
        v_pk_add_f32 v[32:33], v[32:33], v[36:37]
        v_pk_add_f32 v[34:35], v[34:35], v[38:39]
        s_waitcnt lgkmcnt(0)
        v_pk_add_f32 v[44:45], v[44:45], v[48:49]
        v_pk_add_f32 v[46:47], v[46:47], v[50:51]
        v_pk_add_f32 v[32:33], v[32:33], v[44:45]
        v_pk_add_f32 v[34:35], v[34:35], v[46:47]
        ''')
        s.tag4(32,193)
        s.e(f'''
        s_cbranch_scc1 L_op_loc
        buffer_store_dwordx4 v[32:35], v56, s[44:47], s59 offen sc1
        s_branch L_op_done
        L_op_loc:
        buffer_store_dwordx4 v[32:35], v56, s[44:47], s59 offen
        L_op_done:
        ''')
        s.lds_signal(C_OC,15,192)
        s.e('L_kv_tail:')
        s.stamp(6)
        s.e('s_cmp_lt_u32 s5, 18\ns_cbranch_scc1 L_kv_ffn\ns_cmp_lt_u32 s5, 27\ns_cbranch_scc0 L_end')
        s.e(f'''
        v_bfe_u32 v49, v0, 2, 2              ; sigma
        v_add_u32 v48, v54, v49
        v_lshlrev_b32 v48, 7, v48
        v_and_b32 v49, 3, v0
        v_lshl_add_u32 v48, v49, 5, v48
        v_bfe_u32 v49, v0, 4, 1
        v_lshl_add_u32 v48, v49, 4, v48
        s_lshl_b32 s60, s4, 5
        s_lshl_b32 s61, s3, 2
        s_add_u32 s60, s60, s61              ; x*32 + b*4
        s_lshl_b32 s61, s60, 7
        s_add_u32 s61, s61, {W_ML}
        s_lshl_b32 s60, s60, 10
        s_add_u32 s58, s60, {W_OP}
        s_add_u32 s59, s58, {16*1024}
        v_and_b32 v55, 15, v0
        v_lshlrev_b32 v55, 4, v55            ; 8j*2
        v_lshl_add_u32 v55, v49, 3, v55
        v_lshl_add_u32 v55, v54, 4, v55      ; + h*256
        s_mul_i32 s60, s3, {ACTS}
        v_add_u32 v55, s60, v55
        v_lshlrev_b32 v54, 2, v54            ; h*64
        ''')
        s.lds_spin(C_WIS,3,49,15)
        s.stamp(7)
        loads=['buffer_load_dwordx4 v[40:43], v48, s[44:47], s61 offen sc1']
        loads+=[f'buffer_load_dwordx4 v[{64+4*i}:{67+4*i}], v56, s[44:47], s{58+i//4} offen offset:{(i&3)*1024} sc1' for i in range(8)]
        def onv(i):
            if i==0:
                s.e('v_mov_b32 v52, v40')
                for r in (1,2,4,8): s.e(f'v_max_f32_dpp v52, v52, v52 row_ror:{r} row_mask:0xf bank_mask:0xf')
                s.e('v_sub_f32 v52, v40, v52\nv_mul_f32 v52, s50, v52\nv_exp_f32 v52, v52\nv_mul_f32 v53, v52, v41')
                for r in (1,2,4,8): s.e(f'v_add_f32_dpp v53, v53, v53 row_ror:{r} row_mask:0xf bank_mask:0xf')
                s.e('v_rcp_f32 v53, v53\nv_mul_f32 v52, v52, v53')
                for hk in range(2):
                    for sg in range(4): s.e(f'ds_bpermute_b32 v{16+2*(4*hk+sg)}, v54, v52 offset:{(hk*32+sg*4)*4}')
        s.vff=193
        s.poll(loads[:1],[40],49)
        onv(0)
        s.stamp(11)
        if P['PM3']: s.pollm(loads[1:],[64+4*i for i in range(8)],49,[8,10,12,14,16,20,22,24])
        else: s.poll(loads[1:],[64+4*i for i in range(8)],49)
        s.iters(12)
        s.e('s_waitcnt lgkmcnt(0)')
        for i in range(8):
            a=32+4*(i//4); w=16+2*i; d=64+4*i
            for h in (0,2):
                if i&3==0: s.e(f'v_pk_mul_f32 v[{a+h}:{a+h+1}], v[{d+h}:{d+h+1}], v[{w}:{w+1}] op_sel_hi:[1,0]')
                else: s.e(f'v_pk_fma_f32 v[{a+h}:{a+h+1}], v[{d+h}:{d+h+1}], v[{w}:{w+1}], v[{a+h}:{a+h+1}] op_sel_hi:[1,0,1]')
        s.e(f'''
        v_cvt_pk_bf16_f32 v32, v32, v33
        v_cvt_pk_bf16_f32 v33, v34, v35
        v_cvt_pk_bf16_f32 v36, v36, v37
        v_cvt_pk_bf16_f32 v37, v38, v39
        ds_write_b64 v55, v[32:33] offset:{ACT}
        ds_write_b64 v55, v[36:37] offset:{ACT+512}
        ''')
        s.lds_signal(C_ACT,15,192)
        s.stamp(8)
        s.end()
        s.e(f'''
        L_kv_ffn:
        v_lshlrev_b32 v13, 3, v0
        s_mul_i32 s60, s3, {ACTS}
        v_add_u32 v13, s60, v13
        s_and_b32 s60, s5, {1 if P['COOP'] else 0}
        s_lshl_b32 s60, s60, 3
        v_xor_b32 v13, s60, v13
        s_mul_i32 s61, s3, 2304
        s_add_u32 s58, s61, {W_M2+9216}      ; sb
        s_add_u32 s59, s61, {W_M2+2*9216}    ; cb
        s_mul_i32 s60, s4, 9216
        s_add_u32 s60, s60, s61
        s_add_u32 s60, s60, {W_X1}
        ''')
        s.setexec(E48)
        loads=[f'buffer_load_dwordx4 v[{40+4*k}:{43+4*k}], v56, s[44:47], s58 offen offset:{768*k} sc1' for k in range(3)]
        loads+=[f'buffer_load_dwordx4 v[{28+4*k}:{31+4*k}], v56, s[44:47], s59 offen offset:{768*k} sc1' for k in range(3)]
        s.lds_spin(C_WIS,3,64,15,sleep=1)
        s.stamp(11)
        s.poll2(loads,[40,44,48,28,32,36],64,sleep=8)
        for k in range(6): s.e(f'v_pk_add_f32 v[{28+2*k}:{29+2*k}], v[{28+2*k}:{29+2*k}], 1.0 op_sel_hi:[1,0]')
        s.round_pairs(28,12,64)
        s.lds_spin(C_WIS,6,64,15,sleep=1)
        s.stamp(7)
        s.poll2([f'buffer_load_dwordx4 v[{16+4*k}:{19+4*k}], v56, s[44:47], s60 offen offset:{768*k} sc1' for k in range(3)],[16,20,24],64)
        s.stamp(8)
        s.layernorm(16,64)
        s.pk('mul',16,16,28,12); s.round_pairs(16,12,64); s.pk('add',16,16,40,12)
        for k in range(6):
            s.e(f'v_cvt_pk_bf16_f32 v{64+k}, v{16+2*k}, v{17+2*k}')
            if k&1: s.e(f'ds_write_b64 v13, v[{63+k}:{64+k}] offset:{(k>>1)*384}')
        s.lds_signal(C_ACT,15,192)
        s.stamp(9)
        s.end()

    def col_voff(s):
        s.e(f"""
        v_and_b32 v5, 8, v0
        v_lshrrev_b32 v6, 4, v0
        v_lshlrev_b32 v6, 1, v6
        v_add_u32 v5, v5, v6
        v_mul_u32_u24 v1, s56, v5
        v_and_b32 v5, 7, v0
        v_lshlrev_b32 v5, 2, v5
        v_add_lshl_u32 v1, v1, v5, 2
        """)
    def a_addrs(s,base,rows,wmul):
        s.e(f"""
        v_and_b32 v5, 3, v0
        v_mul_u32_u24 v5, {rows}, v5
        v_and_b32 v6, 4, v0
        v_lshl_add_u32 v5, v6, 4, v5
        v_and_b32 v6, 48, v0
        s_mul_i32 s54, s7, {wmul}
        s_add_u32 s54, s54, {base}
        v_add3_u32 v5, v5, v6, s54
        v_mov_b32 v6, {ZERO}
        v_and_b32 v7, 8, v0
        v_cmp_eq_u32 vcc, 0, v7
        v_cndmask_b32 v2, v6, v5, vcc
        v_cndmask_b32 v3, v5, v6, vcc
        """)
    def part_waddr(s):
        s.e(f"""
        v_bfe_u32 v5, v0, 3, 1
        v_mul_u32_u24 v5, {PARTS}, v5
        v_lshrrev_b32 v6, 5, v0
        v_mul_u32_u24 v6, 144, v6
        v_add_u32 v5, v5, v6
        v_and_b32 v6, 7, v0
        v_lshl_add_u32 v5, v6, 4, v5
        s_mul_i32 s54, s7, {2*PARTS}
        v_add_u32 v4, s54, v5
        s_mov_b32 s60, 0x05040100
        s_mov_b32 s61, 0x07060302
        """)
    def col_mfma(s,GB,part,cpart,third=None):
        ns=len(GB)
        for st in range(ns):
            if st==2 and third: s.e(f'ds_read_b128 v[{16+8*st}:{19+8*st}], v{third[0]}\nds_read_b128 v[{20+8*st}:{23+8*st}], v{third[1]}')
            else: s.e(f'ds_read_b128 v[{16+8*st}:{19+8*st}], v2 offset:{128*st}\nds_read_b128 v[{20+8*st}:{23+8*st}], v3 offset:{128*st}')
        for st in range(ns):
            for gm in range(2):
                s.e(f's_waitcnt lgkmcnt({2*ns-1-2*st-gm})')
                for a in range(4):
                    c='0' if (st==0 and gm==0) else f'v[{40+4*a}:{43+4*a}]'
                    b=GB[st]+4*(2*a+gm)
                    s.e(f'v_mfma_f32_16x16x32_bf16 v[{40+4*a}:{43+4*a}], v[{16+8*st+4*gm}:{19+8*st+4*gm}], v[{b}:{b+3}], {c}')
        s.setexec('0xff0000ffff0000ff')
        for a in range(4): s.e(f'ds_write_b128 v4, v[{40+4*a}:{43+4*a}] offset:{part+a*288}')
        s.lds_signal(cpart,15,14)
    def part_sum(s,vaddr,r,part):
        for i in range(6): s.e(f'ds_read_b128 v[{r+4*i}:{r+4*i+3}], v{vaddr} offset:{part+i*PARTS}')
        for i in range(1,6):
            s.e(f's_waitcnt lgkmcnt({5-i})')
            s.pk('add',r,r,r+4*i,4)
    def part_addr(s,v,t):
        s.e(f'v_and_b32 v{v}, 7, v0\nv_mul_u32_u24 v{v}, 144, v{v}\nv_lshrrev_b32 v{t}, 3, v0\nv_lshl_add_u32 v{v}, v{t}, 4, v{v}')
    def early_ids(s):
        s.e(f"""
        s_mul_i32 s58, s101, 3641
        s_mov_b32 s6, s101
        s_lshr_b32 s58, s58, 16              ; M1: idx/18
        s_mul_i32 s53, s58, 18
        s_sub_u32 s6, s6, s53
        s_lshl_b32 s53, s4, 2
        s_and_b32 s54, s5, 3
        s_add_u32 s53, s53, s54
        s_lshl_b32 s53, s53, 1
        s_lshr_b32 s54, s5, 2
        s_cmp_lt_u32 s2, 96
        s_cselect_b32 s53, s53, s6
        s_cselect_b32 s58, s54, s58
        """)
    def w_start(s):
        s.e(f"""
        L_w:
        s_sub_u32 s7, s3, 4
        v_mov_b32 v15, 0
        v_mov_b32 v14, 1
        s_cmp_lt_u32 s101, 54
        s_cbranch_scc0 L_w_ne
        """)
        s.early_ids()
        s.e('s_movk_i32 s56, 6912\ns_cmovk_i32 s56, 8192')
        s.col_voff()
        s.e(f"""
        s_mul_i32 s58, s58, 3
        s_add_u32 s58, s58, s7
        s_lshl_b32 s58, s58, 6               ; k0 = 192*ks + 64*w
        s_mul_i32 s52, s58, s56
        s_lshl_b32 s53, s53, 7
        s_add_u32 s52, s52, s53
        s_mul_i32 s38, s56, 576
        s_mov_b32 s39, 0x20000
        s_movk_i32 s50, 4608
        s_mov_b32 s51, 0x20000
        s_lshl_b32 s57, s58, 1
        v_lshlrev_b32 v12, 1, v0
        s_cmp_lt_u32 s2, 96
        s_waitcnt lgkmcnt(0)
        s_cselect_b64 s[36:37], s[14:15], s[28:29]
        s_cselect_b64 s[48:49], s[8:9], s[26:27]
        """)
        for b in range(4): s.e(f'buffer_load_ushort v{56+b}, v12, s[48:51], s57 offen offset:{1152*b}')
        DQ=s.P['DQ']
        s.e('s_cbranch_scc1 L_w_q0')
        for n in range(8):
            s.e(f'buffer_load_dwordx4 v[{96+4*n}:{99+4*n}], v1, s[36:39], s52 offen nt')
            if n<7: s.e('s_add_u32 s52, s52, s56')
        s.tag_load()
        s.e('s_barrier\ns_branch L_w_early\nL_w_q0:')
        for n in range(s.P['DQ0']): s.qload(n)
        s.tag_load()
        s.e('s_barrier\ns_branch L_w_q1\nL_w_ne:\ns_waitcnt lgkmcnt(0)')
        s.tag_load()
        s.e('s_barrier\ns_branch L_w_l0')
    def qload(s,n):
        r=96+32*(n&1)+4*(n>>1)
        s.e(f'buffer_load_dwordx4 v[{r}:{r+3}], v1, s[36:39], s52 offen offset:{128*(n&1)} nt')
        if n&1 and n<15: s.e('s_add_u32 s52, s52, s56')
    def wwave(s):
        P=s.P
        s.e('L_w_q1:')
        for n in range(P['DQ0'],16):
            if n==P['DQ0'] and n<P['DQ']: s.e(f's_waitcnt vmcnt({P["DQ0"]-1})')
            if n>=P['DQ']: s.e(f's_waitcnt vmcnt({P["DQ"]-1})')
            s.qload(n)
        s.lds_signal(C_QIS,15,14)
        s.e('L_w_early:\nv_mov_b32 v11, 0xff')
        s.stamp(1)
        s.a_addrs(EACT,EACTS,128)
        s.part_waddr()
        s.ws_srd()
        s.e(f's_lshl_b32 s54, s7, 7\nv_add_u32 v12, s54, v12\nv_lshlrev_b32 v13, 4, v0\ns_lshl_b32 s58, s58, 4\ns_add_u32 s58, s58, {W_MP}')
        s.tag_setup()
        s.stamp(12)
        s.e('s_waitcnt vmcnt(8)')
        s.stamp(13)
        for b in range(4): s.e(f'v_lshlrev_b32 v{56+b}, 16, v{56+b}')
        s.e('s_cmp_lt_u32 s2, 96\ns_cbranch_scc1 L_w_q')
        s.silu(56,4,16)
        s.stage4(56,60,12,EACTS,EACT)
        s.stamp(14)
        s.e('s_waitcnt vmcnt(0)')
        s.perms(96,64)
        s.stamp(2)
        s.e('s_branch L_w_emm\nL_w_q:')
        s.lds_spin(C_ST,1,5,15,sleep=1)
        s.e(f'ds_read_b128 v[16:19], v15 offset:{STAT}\nds_read_b128 v[20:23], v15 offset:{STAT+16}\ns_waitcnt lgkmcnt(0)')
        s.pk('add',56,56,16,4,'neg_lo:[0,1] neg_hi:[0,1]'); s.round_pairs(56,4,60)
        s.pk('mul',56,56,20,4); s.round_pairs(56,4,60)
        s.e('s_lshl_b32 s52, s4, 7\ns_add_u32 s52, s52, s58\ns_add_u32 s40, s34, s52\ns_addc_u32 s41, s35, 0')
        hr=[10,11,12,13,18,19]; ho=[9216*i for i in range(6)]
        for i in range(1,6): s.e(f's_add_u32 s{52+i}, s58, {9216*i}')
        so=[58,54,56,53,55,57]
        loads=[f'buffer_load_dwordx4 v[{16+4*i}:{19+4*i}], v13, s[44:47], s{so[i]} offen sc1' for i in range(6)]
        if P['MPH']:
            s.hint_issue(40,ho,hr); s.hint_wait(40,ho,hr,P['SLH'])
            s.stamp(11)
            for x in loads: s.e(x)
        if P['MPV']:
            s.e(f's_waitcnt vmcnt({P["MPV"]-1})')
            s.stamp(11)
            for x in loads: s.e(x)
        s.e(f's_waitcnt vmcnt({6 if (P["MPH"] or P["MPV"]) else 0})')
        s.perms(96,64); s.perms(128,96)
        s.stamp(2)
        s.poll(loads,[16+4*i for i in range(6)],5,sleep=P['SLM'],issued=P['MPH'] or P['MPV'])
        if not P['QREL']: s.lds_signal(C_QIS,15,14)
        s.tree_sum(28,3,28); s.tree_sum(16,3,16)
        s.stamp(3)
        s.e('v_cvt_pk_bf16_f32 v60, v28, v29\nv_cvt_pk_bf16_f32 v61, v30, v31\nv_cvt_pk_bf16_f32 v62, v16, v17\nv_cvt_pk_bf16_f32 v63, v18, v19')
        s.unpack(60,28,29); s.unpack(61,30,31)
        s.e('v_pk_add_f32 v[28:29], v[28:29], 1.0 op_sel_hi:[1,0]\nv_pk_add_f32 v[30:31], v[30:31], 1.0 op_sel_hi:[1,0]')
        s.unpack(62,16,17); s.unpack(63,18,19)
        s.round_pairs(28,4,60)
        s.pk('mul',56,56,28,4); s.round_pairs(56,4,60); s.pk('add',56,56,16,4)
        s.stage4(56,60,12,EACTS,EACT)
        s.e('ds_read_b128 v[16:19], v2\nds_read_b128 v[20:23], v3')
        for gm in range(2):
            s.e(f's_waitcnt lgkmcnt({1-gm})')
            for u in range(2):
                for a in range(4):
                    acc=24+16*u+4*a; b=64+32*u+4*(2*a+gm); c='0' if gm==0 else f'v[{acc}:{acc+3}]'
                    s.e(f'v_mfma_f32_16x16x32_bf16 v[{acc}:{acc+3}], v[{16+4*gm}:{19+4*gm}], v[{b}:{b+3}], {c}')
        s.setexec('0xff0000ffff0000ff')
        for u in range(2):
            for a in range(4): s.e(f'ds_write_b128 v4, v[{24+16*u+4*a}:{27+16*u+4*a}] offset:{(PART0,PART0B)[u]+a*288}')
        s.lds_signal(C_PART0,15,14)
        s.stamp(4)
        s.e('s_branch L_w_late\nL_w_emm:')
        s.col_mfma([64],PART0,C_PART0)
        s.stamp(4)
        s.e('s_branch L_w_late\nL_w_l0:')
        s.part_waddr()
        s.e("""
        L_w_late:
        s_cmp_ge_u32 s2, 252
        s_cbranch_scc1 L_end
        """)
        s.a_addrs(ACT,ACTS,384)
        s.e("""
        s_cmp_lt_u32 s2, 144
        s_cbranch_scc1 L_w_ffn
        s_sub_u32 s53, s5, 18
        s_mul_i32 s54, s4, 4608
        s_add_u32 s53, s53, s54
        s_sub_u32 s6, s2, 198                ; M2 unit
        s_cmp_lt_u32 s2, 216
        s_cselect_b32 s53, s53, s6
        s_movk_i32 s56, 6912
        s_cmovk_i32 s56, 1152
        s_movk_i32 s38, 576
        s_cmovk_i32 s38, 4096
        s_cselect_b64 s[36:37], s[16:17], s[28:29]
        s_cselect_b32 s59, s7, 0
        s_lshl_b32 s53, s53, 7
        s_mul_i32 s38, s56, s38
        s_mov_b32 s39, 0x20000
        s_mul_i32 s52, s7, 192
        s_mul_i32 s52, s52, s56
        s_add_u32 s52, s52, s53
        s_mul_i32 s57, s56, 57
        s_cmp_eq_u32 s59, 2
        s_cselect_b32 s54, 0, 256
        v_add_u32 v8, s54, v2
        v_add_u32 v9, s54, v3
        """)
        s.col_voff()
        s.srd(48,26,4608)
        s.e('s_mul_i32 s54, s7, 384\nv_lshlrev_b32 v12, 1, v0\nv_add_u32 v12, s54, v12')
        if P['LTRIG']>=P['D0']: s.lds_spin(C_LATE,4,5,15,sleep=2)
        s.e(f's_cmp_lt_u32 s2, {216+P["NGA"]}\ns_cselect_b64 vcc, 0, -1')
        s.stamp(5)
        s.e('s_cmp_lt_u32 s2, 216\ns_cbranch_scc1 L_w_l1')
        for st in range(3):
            for b in range(4): s.e(f'buffer_load_ushort v{16+4*st+b}, v12, s[48:51], 0 offen offset:{1152*b+128*st}')
        s.e('L_w_l1:')
        for n in range(24):
            if n==16: s.e('s_cmp_eq_u32 s59, 2\ns_cselect_b32 s52, 0x40000000, s52')
            if n==P['NM2']:
                s.e('s_cbranch_vccz L_w_l4'); s.lds_spin(C_OC,5,5,15,sleep=1); s.e('s_mov_b64 vcc, -1\nL_w_l4:')
            a=s.lab('Ll'); b=s.lab('Ll')
            wa=n>=P['DLATE']; wb=P['DM2']<=n<P['NM2']
            if wa and wb: s.e(f's_cbranch_vccnz {a}\ns_waitcnt vmcnt({P["DLATE"]-1})\ns_branch {b}\n{a}:\ns_waitcnt vmcnt({P["DM2"]-1})\n{b}:')
            elif wa: s.e(f's_cbranch_vccnz {a}\ns_waitcnt vmcnt({P["DLATE"]-1})\n{a}:')
            elif wb: s.e(f's_cbranch_vccz {a}\ns_waitcnt vmcnt({P["DM2"]-1})\n{a}:')
            s.e(f'buffer_load_dwordx4 v[{96+4*n}:{99+4*n}], v1, s[36:39], s52 offen nt')
            if n<23: s.e(f's_add_u32 s52, s52, s{57 if n%8==7 else 56}')
        s.e('s_cmp_lt_u32 s2, 216\ns_cbranch_scc1 L_w_l3\ns_waitcnt vmcnt(24)')
        for r in range(16,28): s.e(f'v_lshlrev_b32 v{r}, 16, v{r}')
        s.silu(16,12,28)
        for st in range(3): s.stage4(16+4*st,28+2*st,12,ACTS,ACT+128*st)
        s.e('L_w_l3:')
        s.lds_signal(C_WIS,15,14)
        s.stamp(6)
        for gq in range(3):
            s.e(f's_waitcnt vmcnt({16-8*gq})'); s.perms(96+32*gq,64+32*gq)
        s.stamp(8)
        s.e('s_cmp_lt_u32 s2, 216\ns_cbranch_scc0 L_w_l2')
        s.lds_spin(C_ACT,4,5,15)
        s.e('L_w_l2:')
        s.col_mfma([64,96,128],PART,C_PART,third=(8,9))
        s.stamp(9)
        s.end()
        s.e('L_w_ffn:\ns_cmp_lt_u32 s101, 54\ns_cbranch_scc1 L_w_ff1')
        s.tag_setup()
        s.e('L_w_ff1:')
        s.ws_srd()
        s.srd(40,24,4608*1152)
        s.e(f'''
        s_lshr_b32 s52, s20, 7
        s_add_u32 s52, s52, s4
        s_sub_u32 s52, 3, s52
        s_and_b32 s52, s52, 7
        s_lshl_b32 s52, s52, 1
        s_add_u32 s52, s52, s5
        s_add_u32 s52, s52, 4                ; + (y-14) mod 18
        s_cmp_ge_u32 s52, 18
        s_cselect_b32 s53, 18, 0
        s_sub_u32 s52, s52, s53
        s_mul_i32 s6, s4, 18
        s_add_u32 s6, s6, s52                ; f
        v_and_b32 v5, 8, v0
        v_lshrrev_b32 v6, 4, v0
        v_lshl_add_u32 v5, v6, 1, v5
        v_mul_u32_u24 v5, {4*9216}, v5       ; (32*kappa+8g)*9216
        v_and_b32 v7, 3, v0
        v_lshl_add_u32 v5, v7, 4, v5
        s_mul_i32 s52, s7, {192*9216}
        s_lshl_b32 s53, s6, 6
        s_add_u32 s52, s52, s53
        v_add_u32 v5, s52, v5
        v_and_b32 v7, 4, v0
        v_cmp_eq_u32 vcc, 0, v7
        v_mov_b32 v61, s22
        v_mov_b32 v62, s20
        v_cndmask_b32 v10, v61, v62, vcc
        v_mov_b32 v61, s23
        v_mov_b32 v62, s21
        v_cndmask_b32 v11, v61, v62, vcc
        v_add_co_u32 v10, vcc, v10, v5
        v_addc_co_u32 v11, vcc, 0, v11, vcc
        s_movk_i32 s54, 9216
        s_mov_b32 s55, 0
        s_mov_b32 s57, 0
        s_and_b32 s56, s5, {1 if P['COOP'] else 0}
        s_xor_b32 s56, s56, 1
        s_mul_i32 s56, s56, {4*9216}
        v_lshl_add_u64 v[62:63], v[10:11], 0, s[56:57]
        s_xor_b32 s56, s56, {4*9216}
        v_lshl_add_u64 v[10:11], v[10:11], 0, s[56:57]
        s_mov_b32 s56, {61*9216}
        v_mul_u32_u24 v1, {8*1152}, v6
        v_and_b32 v7, 15, v0
        v_lshl_add_u32 v1, v7, 4, v1
        s_mul_i32 s52, s6, {32*1152}
        s_mul_i32 s53, s7, 384
        s_add_u32 s52, s52, s53
        s_add_u32 s53, s52, 4608
        v_and_b32 v5, 8, v0
        v_add_u32 v5, v5, v6
        v_mul_u32_u24 v12, 18432, v5
        v_and_b32 v5, 7, v0
        v_lshl_add_u32 v12, v5, 4, v12       ; S5 voffset
        s_mul_i32 s48, s7, {24*18432}
        s_lshl_b32 s49, s6, 7
        s_add_u32 s48, s48, s49
        s_add_u32 s48, s48, {W_S5}
        s_add_u32 s49, s48, {4*18432}
        s_add_u32 s50, s48, {16*18432}
        s_add_u32 s51, s48, {20*18432}
        ''')
        s.part_addr(13,5)
        s.e(f'''
        s_lshl_b32 s58, s7, 8
        s_add_u32 s58, s58, {HH}
        v_lshrrev_b32 v5, 5, v0
        v_lshlrev_b32 v5, 7, v5
        v_and_b32 v7, 31, v0
        v_lshl_add_u32 v5, v7, 1, v5
        v_add_u32 v60, s58, v5
        v_and_b32 v5, 3, v0
        v_lshlrev_b32 v5, 6, v5
        v_lshl_add_u32 v5, v6, 4, v5
        v_add_u32 v5, s58, v5
        v_bfe_u32 v7, v0, 2, 2
        v_mov_b32 v61, {ZERO}
        v_mov_b32 v8, 0xff
        ''')
        for gm in range(4): s.e(f'v_cmp_eq_u32 vcc, {gm}, v7\nv_cndmask_b32 v{56+gm}, v61, v5, vcc')
        s.e('s_lshl_b32 s58, s6, 6\ns_add_u32 s58, s58, s20\ns_bfe_u32 s58, s58, 0x30007\ns_cmp_eq_u32 s58, %d\ns_cselect_b32 s58, 4, 8'%(9 if P['PFA'] else 3))
        s.lds_spin(C_KV,'s58',5,15,sleep=2)
        s.stamp(5)
        g1=[('g',8*st+r) for st in range(3) for r in range(4)]; g2=[('g',8*st+r) for st in range(3) for r in range(4,8)]
        dn=[('d',n) for n in range(16)]
        ops=[]
        for k in range(12):
            ops.append(g1[k])
            if k>=2:
                c=2 if (k%2==0 or k==11) else 1
                ops+=dn[:c]; dn=dn[c:]
        ops+=dn+g2
        if P['ORD']==1: ops=[('d',n) for n in range(16)]+g1+g2
        lines=lambda o: 16 if o[0]=='g' else (8 if o[1]<8 else 4)
        half=False; prevrow=0
        for k,o in enumerate(ops):
            if k==P['NF1'] or k==P['NE3']:
                if half: s.setexec('-1'); half=False
                l=s.lab('Lg'); s.e(f's_cmp_eq_u32 s58, {8 if k==P["NF1"] else 4}\ns_cbranch_scc0 {l}')
                s.lds_spin(C_OC,5,5,15,sleep=1)
                s.e(f'{l}:')
            if k==0 or k==P['NF1']: s.e('s_cmp_eq_u32 s58, 8')
            if k<P['NE3']:
                tot=lines(o); keep=0
                for p in reversed(ops[:k]):
                    if tot+lines(p)>P['FL3']: break
                    tot+=lines(p); keep+=1
                if keep<k:
                    l=s.lab('Lg'); s.e(f's_cbranch_scc1 {l}\ns_waitcnt vmcnt({keep})\n{l}:')
            tot=lines(o); keep=0
            for p in reversed(ops[:k]):
                if tot+lines(p)>(P['FL1'] if k<P['NF1'] else P['FL']): break
                tot+=lines(p); keep+=1
            if keep<k: s.e(f's_waitcnt vmcnt({keep})')
            wanth=(o[0]=='d' and o[1]>=8)
            if wanth!=half: s.setexec(HALF if wanth else '-1'); half=wanth
            if o[0]=='g':
                n=o[1]; row=64*(n//8)+(n&3)
                if n==4: s.e('v_mov_b32 v10, v62\nv_mov_b32 v11, v63'); prevrow=0
                d=row-prevrow; prevrow=row
                if d: s.e(f'v_lshl_add_u64 v[10:11], v[10:11], 0, s[{54 if d==1 else 56}:{55 if d==1 else 57}]')
                s.e(f'global_load_dwordx4 v[{96+4*n}:{99+4*n}], v[10:11], off {"nt" if (n&4 or P["G1NT"]) else ""}')
            else:
                n=o[1]; rho=n&7
                s.e(f'buffer_load_dwordx4 v[{192+4*n}:{195+4*n}], v1, s[40:43], s{52+rho//4} offen offset:{(rho&3)*1152+(256 if n>=8 else 0)} nt')
            if k==P['LNG'] or k==P['LNG2']: s.lds_signal(C_WIS,15,14,restore=HALF if half else '-1')
        s.stamp(6)
        last=lambda pred: len(ops)-1-max(k for k,o in enumerate(ops) if pred(o))
        s.e(f's_waitcnt vmcnt({last(lambda o:o[0]=="d")})'); s.perms(192,64); s.perms(224,192)
        s.stamp(7)
        for gq,dst in ((0,224),(1,96),(2,128)):
            s.e(f's_waitcnt vmcnt({last(lambda o:o[0]=="g" and o[1]//8==gq)})'); s.perms(96+32*gq,dst)
        DB=[64,192]
        s.stamp(8)
        s.lds_spin(C_ACT,4,5,15)
        s.col_mfma([224,96,128],PART,C_PART)
        s.stamp(9)
        s.lds_spin(C_PART,3,5,15)
        s.part_sum(13,16,PART)
        c0=-2*0.7978845608028654*LOG2E; c1=c0*0.044715
        s.round_pairs(16,4,20)
        s.e(f'''
        v_mov_b32 v22, {f2u(c0):#x}
        v_permlane32_swap_b32 v16, v18
        v_permlane32_swap_b32 v17, v19
        v_mul_f32 v20, v16, v16
        v_mul_f32 v21, v17, v17
        v_fmamk_f32 v20, v20, {f2u(c1):#x}, v22
        v_fmamk_f32 v21, v21, {f2u(c1):#x}, v22
        v_mul_f32 v20, v20, v16
        v_mul_f32 v21, v21, v17
        v_exp_f32 v20, v20
        v_exp_f32 v21, v21
        v_add_f32 v20, 1.0, v20
        v_add_f32 v21, 1.0, v21
        v_rcp_f32 v20, v20
        v_rcp_f32 v21, v21
        v_pk_mul_f32 v[16:17], v[16:17], v[20:21]
        v_cvt_pk_bf16_f32 v20, v16, v17
        v_lshlrev_b32 v16, 16, v20
        v_and_b32 v17, 0xffff0000, v20
        v_pk_mul_f32 v[16:17], v[16:17], v[18:19]
        v_cvt_pk_bf16_f32 v20, v16, v17
        ds_write_b16 v60, v20
        ds_write_b16_d16_hi v60, v20 offset:64
        ''')
        for gm in range(4): s.e(f'ds_read_b128 v[{24+4*gm}:{27+4*gm}], v{56+gm}')
        s.e('s_waitcnt lgkmcnt(0)')
        for q in range(4):
            grp,a=q>>1,q&1; acc=40+4*q
            for gm in range(4):
                b=DB[grp]+4*(4*a+gm); c='0' if gm==0 else f'v[{acc}:{acc+3}]'
                s.e(f'v_mfma_f32_16x16x32_bf16 v[{acc}:{acc+3}], v[{24+4*gm}:{27+4*gm}], v[{b}:{b+3}], {c}')
            if q>=2:
                s.tag4(40+4*(q-2),8); s.e(f'buffer_store_dwordx4 v[{32+4*q}:{35+4*q}], v12, s[44:47], s{46+q} offen sc1')
        s.setexec(HALF)
        for q in (2,3):
            s.tag4(40+4*q,8); s.e(f'buffer_store_dwordx4 v[{40+4*q}:{43+4*q}], v12, s[44:47], s{48+q} offen sc1')
        s.setexec('-1')
        s.stamp(10)
        s.end()

    def xf_gather(s):
        s.e(f's_lshl_b32 s52, s4, 9\ns_add_u32 s52, s52, {W_XF}\ns_mov_b32 exec_hi, 0')
        s.poll(['buffer_load_dwordx4 v[8:11], v1, s[44:47], s52 offen sc1'],[8],5,sleep=4)
        s.e('v_cmp_ne_u32 vcc, s18, v8\ns_mov_b64 exec, -1\ns_cmp_eq_u64 vcc, 0\ns_cselect_b32 s19, 2, 1')
    def q_soff(s):
        s.e(f"""
        s_lshr_b32 s52, s5, 4
        s_lshl_b32 s53, s4, 1
        s_add_u32 s52, s52, s53
        s_lshl_b32 s52, s52, 10              ; hkv*1024
        s_bfe_u32 s53, s5, 0x20002
        s_lshl_b32 s53, s53, 14
        s_add_u32 s52, s52, s53
        s_add_u32 s52, s52, {W_QP}
        s_add_u32 s53, s52, 65536
        s_add_u32 s54, s52, 131072
        """)
    def transpose_store(s,voff,soff,loc=0):
        s.e(f'''
        ds_write_b32 v7, v16 offset:{TR}
        ds_write_b32 v7, v17 offset:{TR+256}
        ds_write_b32 v7, v18 offset:{TR+512}
        ds_write_b32 v7, v19 offset:{TR+768}
        ds_read_b128 v[16:19], v1 offset:{TR}
        s_waitcnt lgkmcnt(0)
        ''')
        s.tag4(16,13)
        if loc:
            a=s.lab('Lts'); b=s.lab('Lts')
            s.e(f's_cmp_eq_u32 s19, 2\ns_cbranch_scc0 {a}\nbuffer_store_dwordx4 v[16:19], v{voff}, s[44:47], s{soff} offen\ns_branch {b}\n{a}:')
        s.e(f'buffer_store_dwordx4 v[16:19], v{voff}, s[44:47], s{soff} offen sc1')
        if loc: s.e(f'{b}:')
    def comm(s):
        P=s.P
        s.e('L_comm:')
        s.stamp(1)
        s.ws_srd()
        s.srd(48,8,4608)
        s.e(f"""
        s_cmp_lt_u32 s2, 96
        s_cbranch_scc0 L_c_nx
        v_mul_u32_u24 v5, 72, v0
        buffer_load_dwordx4 v[64:67], v5, s[48:51], 0 offen
        buffer_load_dwordx4 v[68:71], v5, s[48:51], 0 offen offset:16
        buffer_load_dwordx4 v[72:75], v5, s[48:51], 0 offen offset:32
        buffer_load_dwordx4 v[76:79], v5, s[48:51], 0 offen offset:48
        buffer_load_dwordx2 v[80:81], v5, s[48:51], 0 offen offset:64
        L_c_nx:
        s_getreg_b32 s18, hwreg(HW_REG_XCC_ID, 0, 4)
        s_lshl_b32 s18, s18, 8
        v_mov_b32 v13, 0xff
        v_lshlrev_b32 v7, 2, v0
        """)
        s.part_addr(6,5)
        s.early_ids()
        s.tag_setup()
        for j in range(4): s.e(f's_or_b32 s52, s18, s{T0+j}\nv_mov_b32 v{8+j}, s52')
        s.e(f"""
        s_lshl_b32 s52, s4, 5
        s_add_u32 s52, s52, s5
        s_lshl_b32 s52, s52, 4
        s_add_u32 s52, s52, {W_XF}
        s_mov_b64 exec, 1
        buffer_store_dwordx4 v[8:11], v15, s[44:47], s52 offen sc1
        s_mov_b64 exec, -1
        s_cmp_lt_u32 s2, 96
        s_cbranch_scc1 L_c_q
        s_cmp_lt_u32 s101, 54
        s_cbranch_scc0 L_c_xf
        s_mul_i32 s55, s58, 18432
        s_lshl_b32 s53, s53, 10
        s_add_u32 s55, s55, s53
        s_add_u32 s55, s55, {W_MP}
        """)
        s.lds_spin(C_PART0,3,5,15)
        s.part_sum(6,16,PART0)
        s.tag4(16,13,rnd=True)
        s.e('buffer_store_dwordx4 v[16:19], v1, s[44:47], s55 offen sc1')
        s.stamp(2)
        s.e('L_c_xf:')
        s.lds_spin(C_MID,4,5,15,sleep=4)
        s.xf_gather()
        s.e(f"""
        s_sub_u32 s6, s5, 18
        s_cmp_lt_u32 s6, 9
        s_cbranch_scc0 L_c_gq
        s_lshl_b32 s52, s6, 7
        v_lshlrev_b32 v5, 1, v0
        """)
        for b in range(4): s.e(f'buffer_load_ushort v{40+b}, v5, s[48:51], s52 offen offset:{1152*b}')
        if P['PT']:
            s.e(f"""
            s_lshl_b32 s52, s6, {16 if P['PUSH'] else 13}
            s_add_u32 s56, s52, {W_S4}
            s_lshl_b32 s52, s4, {13 if P['PUSH'] else 31}
            s_and_b32 s52, s52, 0xffff
            s_add_u32 s56, s56, s52
            s_mul_i32 s52, s4, 9216
            s_lshl_b32 s53, s6, 8
            s_add_u32 s52, s52, s53
            s_add_u32 s58, s52, {W_X1}
            s_add_u32 s59, s58, 4608
            v_lshlrev_b32 v5, 7, v0
            """)
            if P['PT']&2: s.e('buffer_load_dword v250, v5, s[44:47], s56 offen sc1')
            for b in range(4): s.e(f'buffer_load_dword v250, v7, s[44:47], s{58+b//2} offen offset:{(b&1)*2304} sc1')
        s.e('s_branch L_c_gq\nL_c_q:\ns_waitcnt vmcnt(1)')
        for k in range(18): s.unpack(64+k,96+2*k,97+2*k)
        s.sums(96,36,16)
        s.stats_tail(16)
        s.e(f"""
        v_cvt_pk_bf16_f32 v18, v18, v18
        v_lshlrev_b32 v18, 16, v18
        v_sqrt_f32 v18, v18
        v_lshrrev_b32 v5, 4, v0
        v_cvt_pk_bf16_f32 v18, v18, v18
        v_lshlrev_b32 v18, 16, v18
        v_rcp_f32 v18, v18
        v_lshlrev_b32 v5, 2, v5
        s_mov_b32 exec_lo, 0x00010001
        s_mov_b32 exec_hi, 0x00010001
        ds_write_b32 v5, v16 offset:{STAT}
        ds_write_b32 v5, v18 offset:{STAT+16}
        """)
        s.lds_signal(C_ST,15,14)
        s.e(f"""
        s_lshl_b32 s55, s58, 16
        s_lshl_b32 s53, s53, 8
        s_add_u32 s55, s55, s53
        s_add_u32 s55, s55, {W_QP}
        v_lshrrev_b32 v5, 4, v0
        v_lshlrev_b32 v5, 14, v5
        v_and_b32 v12, 15, v0
        v_lshl_add_u32 v12, v12, 4, v5
        s_waitcnt vmcnt(0)
        """)
        s.xf_gather()
        if P['PT']:
            s.q_soff()
            s.e('v_lshlrev_b32 v5, 7, v0\ns_mov_b32 exec_lo, 0xff\ns_mov_b32 exec_hi, 0')
            for i in range(3): s.e(f'buffer_load_dword v250, v5, s[44:47], s{52+i} offen sc1')
            s.e('s_mov_b64 exec, -1')
        s.stamp(13)
        s.lds_spin(C_PART0,3,5,15)
        for u in range(2):
            for i in range(6): s.e(f'ds_read_b128 v[{16+24*u+4*i}:{19+24*u+4*i}], v6 offset:{(PART0,PART0B)[u]+i*PARTS}')
        for u in range(2):
            s.e(f's_waitcnt lgkmcnt({6 if u==0 else 4})')
            s.tree_sum(16+24*u,6,16+24*u)
            for j in range(4): s.e(f'ds_write_b32 v7, v{16+24*u+j} offset:{TR+1024*u+256*j}')
        s.e(f'ds_read_b128 v[16:19], v1 offset:{TR}\nds_read_b128 v[20:23], v1 offset:{TR+1024}\ns_cmp_eq_u32 s19, {2 if P["QLOC"] else 3}\ns_waitcnt lgkmcnt(0)')
        s.tag4(16,13,rnd=True); s.tag4(20,13,rnd=True)
        s.e("""s_cbranch_scc1 L_qp_loc
        buffer_store_dwordx4 v[16:19], v12, s[44:47], s55 offen sc1
        buffer_store_dwordx4 v[20:23], v12, s[44:47], s55 offen offset:256 sc1
        s_branch L_qp_done
        L_qp_loc:
        buffer_store_dwordx4 v[16:19], v12, s[44:47], s55 offen
        buffer_store_dwordx4 v[20:23], v12, s[44:47], s55 offen offset:256
        L_qp_done:""")
        if P['QREL']: s.e(f'v_mov_b32 v5, 6\ns_mov_b64 exec, 1\nds_write_b32 v15, v5 offset:{C_QIS}\ns_mov_b64 exec, -1')
        s.stamp(2)
        s.e(f"""
        L_c_gq:
        """)
        if P['PT']:
            s.e(f"""
            v_lshlrev_b32 v5, 7, v0
            s_lshl_b32 s52, s4, 5
            s_add_u32 s52, s52, s5
            s_lshl_b32 s53, s52, 7
            s_add_u32 s53, s53, {W_ML}
            s_lshl_b32 s52, s52, 10
            s_add_u32 s52, s52, {W_OP}
            s_mov_b32 exec_lo, 0xff
            s_mov_b32 exec_hi, 0
            buffer_load_dword v250, v5, s[44:47], s52 offen sc1
            s_mov_b64 exec, 1
            buffer_load_dword v250, v5, s[44:47], s53 offen sc1
            s_mov_b64 exec, -1
            """)
        s.q_soff()
        s.e(f"""
        v_lshlrev_b32 v8, 3, v0
        s_and_b32 s55, s5, 1
        s_lshl_b32 s55, s55, 7
        s_add_u32 s55, s55, s52
        s_add_u32 s40, s34, s55
        s_addc_u32 s41, s35, 0
        """)
        hr=[10,11,12,13,14,15,16,17,20,21,22,23]; ho=[65536*(i//4)+256*(i%4) for i in range(12)]
        if not P['QLOC']:
            s.hint_issue(40,ho[:1],hr[:1]); s.hint_wait(40,ho[:1],hr[:1],4)
            s.hint_issue(40,ho[1:],hr[1:]); s.hint_wait(40,ho[1:],hr[1:],P['SLH'])
        s.e('v_mov_b32 v9, s19')
        s.stamp(12)
        s.vff=13
        if P['QPIPE']:
            ql=lambda b: [f'buffer_load_dwordx4 v[{b+4*i}:{b+3+4*i}], v1, s[44:47], s{52+i} offen sc1' for i in range(3)]
            def chk(b):
                s.e('s_waitcnt vmcnt(3)')
                for i in range(12): s.e(f'v_xor_b32 v{b+i}, s{T0+(i&3)}, v{b+i}')
                s.e(f'v_or3_b32 v5, v{b}, v{b+1}, v{b+2}')
                for i in range(3,11,2): s.e(f'v_or3_b32 v5, v5, v{b+i}, v{b+i+1}')
                s.e(f'v_bitop3_b32 v5, v5, v{b+11}, v13 bitop3:0xa8')
                s.tree_sum(b,3,20)
                s.e('v_cmp_ne_u32 vcc, 0, v5')
            s.e(f's_mov_b32 s62, {BOUND}')
            for x in ql(24): s.e(x)
            s.e(f's_sleep {P["QPIPE"]}\nL_qp_l:')
            for x in ql(96): s.e(x)
            chk(24)
            s.e('s_cbranch_vccz L_qp_d')
            for x in ql(24): s.e(x)
            chk(96)
            s.e('s_sub_u32 s62, s62, 1\ns_cbranch_scc1 L_qp_d\ns_cbranch_vccnz L_qp_l\nL_qp_d:')
        else:
            s.poll([f'buffer_load_dwordx4 v[{24+4*i}:{27+4*i}], v1, s[44:47], s{52+i} offen sc1' for i in range(3)],[24,28,32],5,sleep=P['SLQ'])
            s.tree_sum(24,3,20)
        s.e(f"""
        v_cvt_pk_bf16_f32 v20, v20, v21
        v_cvt_pk_bf16_f32 v21, v22, v23
        ds_write_b64 v8, v[20:21] offset:{QL}
        s_mov_b64 exec, 1
        ds_write_b32 v15, v9 offset:{C_Q}
        s_mov_b64 exec, -1
        """)
        s.stamp(3)
        if P['PFA'] or P['PFB']:
            s.srd(36,20,576*9216); s.srd(40,22,576*9216)
            s.e(f"""
            s_mul_i32 s52, s4, 1152
            s_lshr_b32 s53, s20, 7
            s_add_u32 s53, s53, s4
            s_sub_u32 s53, 3, s53
            s_and_b32 s53, s53, 7
            s_cmp_eq_u32 s53, 0
            s_cselect_b32 s54, 15, 0
            s_lshl_b32 s53, s53, 7
            s_add_u32 s53, s53, s52
            v_mul_u32_u24 v200, 3641, v0
            v_lshrrev_b32 v200, 16, v200           ; lane/18
            v_mul_u32_u24 v201, 18, v200
            v_sub_u32 v201, v0, v201
            s_mul_i32 s55, s5, 18
            v_add_u32 v201, s55, v201
            v_mul_u32_u24 v201, 9216, v201
            v_lshl_add_u32 v201, v200, 10, v201
            v_mul_u32_u24 v200, 7282, v0
            v_lshrrev_b32 v200, 16, v200           ; lane/9
            v_mul_u32_u24 v202, 9, v200
            v_sub_u32 v202, v0, v202
            s_mul_i32 s55, s5, 6
            v_add_u32 v200, s55, v200              ; j
            v_lshrrev_b32 v203, 6, v200
            v_lshl_add_u32 v200, v203, 7, v200
            v_add_u32 v200, 128, v200              ; row = j + 128*(j/64) + 128
            v_mul_u32_u24 v200, 9216, v200
            v_lshl_add_u32 v202, v202, 7, v200      ; B
            """)
            if P['PFW']: s.lds_spin(C_KV,8,5,15,sleep=1)
            if P['PFA']:
                s.e('s_cmp_eq_u32 s54, 0\ns_cselect_b32 exec_lo, 0x3ffff, -1\ns_mov_b32 exec_hi, s54')
                s.e('buffer_load_dword v250, v201, s[36:39], s53 offen\nbuffer_load_dword v250, v201, s[40:43], s53 offen')
            if P['PFB']:
                s.e('s_mov_b32 exec_lo, -1\ns_mov_b32 exec_hi, 0x3fffff')
                s.e('buffer_load_dword v250, v202, s[36:39], s52 offen\nbuffer_load_dword v250, v202, s[40:43], s52 offen')
            s.e('s_mov_b64 exec, -1')
        s.e(f"""
        s_cmp_lt_u32 s2, 144
        s_cbranch_scc1 L_end
        s_waitcnt vmcnt(0)
        s_cmp_lt_u32 s2, 216
        s_cbranch_scc1 L_c_wo
        s_cmp_lt_u32 s2, 252
        s_cbranch_scc0 L_end
        s_sub_u32 s6, s2, 216
        s_mul_i32 s52, s6, 7282
        s_lshr_b32 s52, s52, 16              ; /9
        s_mul_i32 s53, s52, 9
        s_sub_u32 s53, s6, s53
        s_mul_i32 s55, s52, 9216
        s_lshl_b32 s53, s53, 8
        s_add_u32 s55, s55, s53
        s_add_u32 s55, s55, {W_M2}
        v_lshrrev_b32 v5, 4, v0
        v_mul_u32_u24 v5, 2304, v5
        v_and_b32 v12, 15, v0
        v_lshl_add_u32 v12, v12, 4, v5
        """)
        s.lds_spin(C_PART,3,5,15,sleep=1)
        s.part_sum(6,16,PART)
        s.round_pairs(16,4,20)
        s.transpose_store(12,55)
        s.stamp(4)
        s.end()
        s.e(f'''
        L_c_wo:
        s_sub_u32 s6, s5, 18                 ; cb
        s_lshl_b32 s52, s6, 7
        v_lshlrev_b32 v5, 1, v0
        v_and_b32 v12, 3, v0
        v_lshlrev_b32 v12, 3, v12
        v_lshrrev_b32 v12, v12, s{T0+4}
        v_and_b32 v12, 0xff, v12
        s_lshl_b32 s53, s6, 8
        s_add_u32 s56, s53, {W_M2}
        s_add_u32 s57, s56, 4608
        s_add_u32 s58, s53, {W_M2+3*9216}
        s_add_u32 s59, s58, 4608
        ''')
        s.e('s_mov_b32 s24, s56\ns_mov_b32 s25, s57')
        galoads=[f'buffer_load_dword v{44+i}, v7, s[44:47], s{24+i//2} offen offset:{2304*(i&1)} sc1' for i in range(4)]
        for r in range(40,44): s.e(f'v_lshlrev_b32 v{r}, 16, v{r}')
        s.e(f'''
        s_lshl_b32 s52, s6, {16 if P['PUSH'] else 13}
        s_add_u32 s56, s52, {W_S4}
        s_lshl_b32 s52, s4, 10
        s_add_u32 s55, s56, s52
        s_lshl_b32 s52, s4, {13 if P['PUSH'] else 31}
        s_and_b32 s52, s52, 0xffff
        s_add_u32 s56, s56, s52
        s_add_u32 s57, s56, 4096
        s_mul_i32 s52, s4, 9216
        s_lshl_b32 s53, s6, 8
        s_add_u32 s52, s52, s53
        s_add_u32 s58, s52, {W_X1}
        s_add_u32 s59, s58, 4608
        v_and_b32 v9, 7, v0
        v_lshlrev_b32 v9, 3, v9
        v_add_u32 v9, s4, v9                 ; 8*jj + x
        v_lshrrev_b32 v10, 4, v0             ; b
        v_lshlrev_b32 v11, 4, v9
        v_lshl_add_u32 v11, v10, 2, v11
        v_mul_u32_u24 v10, 1152, v10
        v_lshl_add_u32 v10, v9, 1, v10
        ''')
        if P['PUSH']:
            for d in range(8): s.e(f's_add_u32 s52, s4, {d+1}\ns_and_b32 s52, s52, 7\ns_lshl_b32 s52, s52, 13\ns_add_u32 s{36+d}, s55, s52')
        s.stamp(5)
        s.lds_spin(C_PART,3,5,15)
        s.part_sum(6,16,PART)
        s.tag4(16,13)
        if P['PUSH']:
            for d in range(8): s.e(f'buffer_store_dwordx4 v[16:19], v1, s[44:47], s{36+d} offen sc1')
        else: s.e('buffer_store_dwordx4 v[16:19], v1, s[44:47], s55 offen sc1')
        s.stamp(6)
        for x in galoads: s.e(x)
        loads=[f'buffer_load_dwordx4 v[{64+4*i}:{67+4*i}], v1, s[44:47], s{56+i//4} offen offset:{(i&3)*1024} sc1' for i in range(8)]
        def acc(i):
            if i==1: s.pk('add',20,64,68,4)
            elif i>1: s.pk('add',20,20,64+4*i,4)
        if P['PM4']: s.pollm(loads,[64+4*i for i in range(8)],5,[8,10,12,14,16,20,22,26])
        else: s.poll(loads,[64+4*i for i in range(8)],5)
        s.iters(13)
        s.tree_sum(64,8,20)
        s.poll(galoads,[44+i for i in range(4)],9,sleep=1,lanetag=12,issued=True)
        s.stamp(7)
        s.round_pairs(20,4,24); s.pk('mul',20,20,44,4)
        s.round_pairs(20,4,24); s.pk('add',20,20,40,4)
        s.round_pairs(20,4,24)
        for b in range(4): s.e(f'v_or_b32 v{24+b}, v12, v{20+b}')
        s.e('s_cmp_eq_u32 s19, 2\ns_cbranch_scc1 L_x1_loc')
        for b in range(4): s.e(f'buffer_store_dword v{24+b}, v7, s[44:47], s{58+b//2} offen offset:{(b&1)*2304} sc1')
        s.e('s_branch L_x1_done\nL_x1_loc:')
        for b in range(4): s.e(f'buffer_store_dword v{24+b}, v7, s[44:47], s{58+b//2} offen offset:{(b&1)*2304}')
        s.e('L_x1_done:')
        s.stamp(8)
        s.e(f's_lshl_b32 s53, s6, 8\ns_add_u32 s58, s53, {W_M2+3*9216}\ns_add_u32 s59, s58, 4608')
        s.poll([f'buffer_load_dword v{48+i}, v7, s[44:47], s{58+i//2} offen offset:{2304*(i&1)} sc1' for i in range(4)],[48+i for i in range(4)],9,sleep=4,lanetag=12)
        s.e(f'ds_write_b128 v1, v[48:51] offset:{TR+1024}')
        s.srd(48,30,4608)
        s.e(f'''
        ds_write_b128 v1, v[20:23] offset:{TR}
        ds_read_b32 v28, v11 offset:{TR}
        ds_read_b32 v29, v11 offset:{TR+1024}
        s_lshl_b32 s52, s6, 3
        s_add_u32 s52, s52, s4
        s_mul_i32 s52, s52, 18432
        s_add_u32 s52, s52, {W_S5}
        s_add_u32 s53, s52, 4096
        s_add_u32 s54, s52, 8192
        s_add_u32 s55, s52, 12288
        s_add_u32 s56, s52, 16384
        s_lshl_b32 s57, s6, 7
        v_mov_b32 v30, s{T0+4}
        s_waitcnt lgkmcnt(0)
        ''')
        loads=[f'buffer_load_dwordx4 v[{64+4*i}:{67+4*i}], v1, s[44:47], s{52+i//4} offen offset:{(i&3)*1024} sc1' for i in range(18)]
        if P['HINT']:
            s.e('s_mov_b32 exec_lo, 0xff\ns_mov_b32 exec_hi, 0')
            s.poll(loads[:1],[64],5)
            s.e('s_mov_b64 exec, -1')
        s.stamp(9)
        if P['PM5']: s.pollm(loads,[64+4*i for i in range(18)],5,[8,10,12,14,16,20,22,26,28],grp=2,peel=True)
        else: s.poll(loads,[64+4*i for i in range(18)],5)
        s.iters(14)
        s.tree_sum(64,18,20)
        s.stamp(10)
        s.e(f'''
        v_permlane32_swap_b32 v20, v22
        v_permlane32_swap_b32 v21, v23
        v_pk_add_f32 v[20:21], v[20:21], v[22:23]
        v_permlane16_swap_b32 v20, v21
        v_add_f32 v20, v20, v21
        v_add_f32_dpp v20, v20, v20 row_ror:8 row_mask:0xf bank_mask:0xf
        v_cvt_pk_bf16_f32 v20, v20, v20
        v_lshlrev_b32 v20, 16, v20
        v_mul_f32 v20, v20, v29
        v_cvt_pk_bf16_f32 v20, v20, v20
        v_lshlrev_b32 v20, 16, v20
        v_add_f32 v20, v20, v28
        v_cvt_pk_bf16_f32 v20, v20, v20
        s_mov_b32 exec_lo, 0x00ff00ff
        s_mov_b32 exec_hi, 0x00ff00ff
        buffer_store_short v20, v10, s[48:51], s57 offen
        s_cmp_eq_u32 s2, 144
        s_cbranch_scc0 L_c_fin
        s_mov_b64 exec, 1
        buffer_store_dword v30, v15, s[44:47], 0 offen offset:{W_EP} sc1
        L_c_fin:
        s_mov_b64 exec, -1
        ''')
        s.stamp(11)
        s.end()

    def build(s):
        P=s.P
        assert P['D0']<=P['MID']<32 and P['D0']<=P['SIG']<32 and P['LTRIG']<32 and 0<=P['LNG']<P['LNG2']<40 and P['NF1']<P['NE3']<40 and P['D0']<P['N0']<P['NA']<=P['NCU'] and P['D0']<=P['SIG0']<P['SIG'] and P['DQ']%2==0
        if s.P['STAMP']:
            for i in range(1,16): s.e(f's_mov_b32 s{64+2*i}, 0')
        s.stamp(0)
        s.e(f"""
        s_load_dwordx16 s[8:23], s[0:1], 0
        s_load_dwordx8 s[24:31], s[0:1], 64
        s_load_dwordx4 s[32:35], s[0:1], 96
        v_lshrrev_b32 v1, 6, v0
        s_cmp_ge_u32 s2, 256
        v_readfirstlane_b32 s3, v1
        s_cbranch_scc1 L_exit
        v_and_b32 v0, 63, v0
        s_and_b32 s4, s2, 7
        s_lshr_b32 s5, s2, 3
        s_cmp_lt_u32 s3, 4
        s_cbranch_scc1 L_kv
        s_sub_u32 s6, s5, 12
        s_sub_u32 s7, 37, s5
        s_cmp_lt_u32 s5, 18
        s_cselect_b32 s6, s6, s7             ; y' : 12..17 -> 0..5, 31 -> 6, 30 -> 7
        s_mul_i32 s6, s6, 7
        s_add_u32 s101, s6, s4
        s_cmp_eq_u32 s5, 30
        s_cselect_b32 s7, 3, 1
        s_sub_u32 s101, s101, s7
        s_cmp_lt_u32 s4, s7
        s_cselect_b32 s101, 99, s101
        s_cmp_lt_u32 s2, 96
        s_cselect_b32 s101, 0, s101
        s_cmp_lt_u32 s3, 7
        s_cbranch_scc1 L_w
        v_mov_b32 v12, 0
        v_mov_b32 v13, 0
        v_mov_b32 v14, 0
        v_mov_b32 v15, 0
        v_lshlrev_b32 v1, 4, v0
        ds_write_b128 v1, v[12:15] offset:{ZERO}
        s_getpc_b64 s[52:53]
        L_pc:
        s_and_b32 s54, s5, 7
        s_mul_i32 s54, s54, CODE_SLICE
        s_add_u32 s54, s54, 1024-(L_pc-{NAME})
        s_add_u32 s52, s52, s54
        s_addc_u32 s53, s53, 0
        """)
        if s.P['PREF']:
            for i in range(s.P['SLICE']//1024): s.e(f'global_load_dwordx4 v[24:27], v1, s[52:53] offset:{i*1024}')
        s.e('v_mov_b32 v14, 1\ns_waitcnt lgkmcnt(0)')
        s.tag_load()
        s.e('s_barrier\ns_branch L_comm')
        s.w_start()
        s.e('L_kv:')
        s.kv_start()
        s.e('L_firstkb:')
        s.kv(); s.wwave(); s.comm()
        s.e('L_end:'); s.end()
        if s.P['STAMP']:
            s.e('L_stampout:\ns_waitcnt vmcnt(0) lgkmcnt(0)\ns_memrealtime s[94:95]\ns_waitcnt lgkmcnt(0)')
            s.ws_srd()
            s.e(f's_lshl_b32 s2, s2, 3\ns_add_u32 s2, s2, s3\ns_lshl_b32 s2, s2, 6\ns_add_u32 s2, s2, {W_ST}\nv_mov_b32 v0, 0\ns_mov_b64 exec, 1')
            for q in range(4):
                for j in range(4): s.e(f'v_mov_b32 v{4+j}, s{64+2*(4*q+j)}')
                s.e(f'buffer_store_dwordx4 v[4:7], v0, s[44:47], s2 offen offset:{16*q}\ns_nop 1')
        s.e('L_exit:\ns_endpgm')
        lines,probs=fix_hazards(s.L)
        for p in probs: print('HAZARD EDGE',p,file=sys.stderr)
        return lines

def generate(P={}):
    g=G(P); lines=g.build()
    ref=open('adaLN_cond__sliding_block_cached__glu_gated_geglu__decode.s.ref').read().split('\n')
    hdr=[l for l in ref[:ref.index('.amdgcn_target "amdgcn-amd-amdhsa--gfx950"')] if '@launch' not in l]
    out='\n'.join(hdr)+f'\n; @launch grid=(256,1,1) block=(512,1,1) lds={LDSZ}\n'
    out+=f'.amdgcn_target "amdgcn-amd-amdhsa--gfx950"\n.text\n.p2align 12\n.set CODE_SLICE, {g.P["SLICE"]}\n.globl {NAME}\n.p2align 8\n.type {NAME},@function\n{NAME}:\n'
    for l in lines: out+=(l if l.endswith(':') or l.startswith('.') else '    '+l)+'\n'
    out+=f'''L_codeend:
.fill (8*CODE_SLICE+1024-(L_codeend-{NAME}))/4, 4, 0xbf810000
.section .rodata,"a"
.p2align 6
.amdhsa_kernel {NAME}
  .amdhsa_next_free_vgpr 256
  .amdhsa_next_free_sgpr 102
  .amdhsa_accum_offset 256
  .amdhsa_group_segment_fixed_size 0
  .amdhsa_kernarg_size 112
  .amdhsa_user_sgpr_count 2
  .amdhsa_user_sgpr_kernarg_segment_ptr 1
  .amdhsa_system_sgpr_workgroup_id_x 1
  .amdhsa_float_denorm_mode_32 3
.end_amdhsa_kernel
'''
    return out
if __name__=='__main__':
    P={}
    for a in sys.argv[2:]:
        k,v=a.split('='); P[k]=int(v)
    open(sys.argv[1],'w').write(generate(P))
```
